```python
import torch

def _softmax(x, axis=-1):
    return torch.softmax(x, dim=axis)
def _gelu(x):
    return torch.nn.functional.gelu(x, approximate="tanh")
def _silu(x):
    return torch.nn.functional.silu(x)
def _sigmoid(x):
    return torch.sigmoid(x)
def _layernorm(x, axis=-1, eps=1e-5):
    m = x.mean(dim=axis, keepdim=True)
    v = x.var(dim=axis, keepdim=True, unbiased=False)
    return (x - m) / torch.sqrt(v + eps)
def _scatter_add(tgt, idx, src, axis=0):
    return tgt.clone().index_add_(axis, idx, src)
def _segment_sum(src, seg, n):
    out = torch.zeros((n,) + src.shape[1:], dtype=src.dtype)
    return out.index_add_(0, seg, src)
def _pad(x, pw):
    flat = tuple(v for pair in reversed(pw) for v in pair)
    return torch.nn.functional.pad(x, flat)

kernel_name = 'standalone__softmax_full_causal__prompt'

def setup_inputs():

    _w = (lambda a: (lambda t: t.to(torch.bfloat16) if t.is_floating_point() else t)(torch.as_tensor(a)))
    B, H, S, D = 1, 32, 2048, 128
    return {
        "q": _w((lambda *s: torch.randn(*s, dtype=torch.bfloat16) * 0.8)(B, H, S, D)),
        "k": _w((lambda *s: torch.randn(*s, dtype=torch.bfloat16) * 0.8)(B, H, S, D)),
        "v": _w((lambda *s: torch.randn(*s, dtype=torch.bfloat16) * 0.05)(B, H, S, D)),
    }

def reference(q, k, v):
    B, H, S, D = q.shape[0], q.shape[1], q.shape[2], q.shape[3]
    scale = D ** -0.5
    scores = torch.einsum('bhqd,bhkd->bhqk', q, k) * scale
    qi = torch.reshape(torch.arange(S), (1, 1, S, 1))
    kj = torch.reshape(torch.arange(S), (1, 1, 1, S))
    causal_bias = (lambda x, dt: x.to(dt))(kj > qi, scores.dtype) * (-1e9)
    attn = _softmax(scores + causal_bias, axis=-1)
    return torch.einsum('bhqk,bhkd->bhqd', attn, v)
```

```python
import re

TRANS = ('v_exp_f32', 'v_log_f32', 'v_rcp_f32', 'v_rsq_f32', 'v_sqrt_f32', 'v_sin_f32', 'v_cos_f32')


def _regs(tok):
    tok = tok.strip()
    tok = tok.lstrip('-')
    m = re.fullmatch(r'abs\((.*)\)', tok)
    if m:
        tok = m.group(1)
    m = re.fullmatch(r'([vsa])\[(\d+):(\d+)\]', tok)
    if m:
        return {(m.group(1), i) for i in range(int(m.group(2)), int(m.group(3)) + 1)}
    m = re.fullmatch(r'([vsa])(\d+)', tok)
    if m:
        return {(m.group(1), int(m.group(2)))}
    if tok in ('vcc', 'vcc_lo', 'vcc_hi'):
        return {('vcc', 0)}
    if tok == 'm0':
        return {('m0', 0)}
    if tok == 'exec':
        return {('exec', 0)}
    return set()


class Ins:
    __slots__ = ('text', 'mn', 'dst', 'src', 'kind', 'srcc', 'ws')


def parse(text):
    t = text.split(';')[0].strip()
    ins = Ins()
    ins.text = text
    parts = t.split(None, 1)
    mn = parts[0]
    ins.mn = mn
    ops = []
    if len(parts) > 1:
        cur = ''
        depth = 0
        for ch in parts[1]:
            if ch == '[':
                depth += 1
            if ch == ']':
                depth -= 1
            if ch == ',' and depth == 0:
                ops.append(cur.strip())
                cur = ''
            else:
                cur += ch
        ops.append(cur.strip())
        last = ops[-1].split()
        if last:
            ops[-1] = last[0]
    ins.dst = set()
    ins.src = set()
    ins.srcc = set()
    ins.ws = 1
    R = [_regs(o) for o in ops]
    if mn.startswith('v_mfma'):
        ins.kind = 'mfma'
        ins.dst = R[0]
        ins.src = R[1] | R[2]
        ins.srcc = R[3]
    elif mn.startswith('v_permlane32_swap') or mn.startswith('v_permlane16_swap'):
        ins.kind = 'perm'
        ins.dst = R[0] | R[1]
        ins.src = R[0] | R[1]
    elif mn.startswith('v_readfirstlane') or mn.startswith('v_readlane'):
        ins.kind = 'rdlane'
        ins.dst = R[0]
        ins.src = set().union(*R[1:])
    elif mn.startswith('v_cmp'):
        ins.kind = 'valu'
        ins.dst = R[0]
        ins.src = set().union(*R[1:])
    elif mn.startswith('v_'):
        ins.kind = 'trans' if mn.replace('_e32', '').replace('_e64', '') in TRANS else 'valu'
        ins.dst = R[0]
        ins.src = set().union(*R[1:]) if len(R) > 1 else set()
        if mn.startswith('v_fmac') or mn.startswith('v_pk_fmac'):
            ins.src |= R[0]
    elif mn.startswith('ds_read') or mn.startswith('ds_bpermute'):
        ins.kind = 'ds'
        ins.dst = R[0]
        ins.src = set().union(*R[1:])
    elif mn.startswith('ds_write'):
        ins.kind = 'ds'
        ins.src = set().union(*R)
    elif mn.startswith('buffer_load') or mn.startswith('global_load'):
        ins.kind = 'vmem'
        if ' lds' in t:
            ins.src = set().union(*R) | {('m0', 0)}
            ins.kind = 'dma'
        else:
            ins.dst = R[0]
            ins.src = set().union(*R[1:])
    elif mn.startswith('buffer_store') or mn.startswith('global_store'):
        ins.kind = 'store'
        ins.src = set().union(*R)
        ins.dst = set()
    elif mn == 's_nop':
        ins.kind = 'salu'
        ins.ws = int(ops[0], 0) + 1
    elif mn.startswith('s_'):
        ins.kind = 'salu'
        if mn.startswith('s_cmp') or mn.startswith('s_cbranch') or mn in ('s_branch', 's_barrier', 's_waitcnt', 's_endpgm', 's_setprio', 's_setpc_b64'):
            ins.src = set().union(*R) if R else set()
        else:
            ins.dst = R[0] if R else set()
            ins.src = set().union(*R[1:]) if len(R) > 1 else set()
    else:
        raise ValueError('unknown instr ' + text)
    return ins


class Asm:
    def __init__(self):
        self.lines = []
        self.hist = []
        self.nops_inserted = 0
        self.warn = False

    def raw(self, text):
        self.lines.append(text)

    def label(self, name):
        self.lines.append(name + ':')

    def comment(self, t):
        self.lines.append('    ; ' + t)

    def _need(self, ins):
        need = 0
        dist = 0
        isvalu = ins.kind in ('valu', 'trans', 'perm', 'rdlane')
        for p in reversed(self.hist[-40:]):
            req = 0
            if p.kind == 'mfma':
                if ins.kind == 'mfma':
                    if p.dst & ins.src:
                        req = max(req, 12)
                    if p.dst & ins.srcc:
                        if p.dst != ins.srcc:
                            req = max(req, 10)
                    elif p.dst & ins.dst:
                        req = max(req, 0)
                else:
                    if p.dst & (ins.src | ins.dst):
                        req = max(req, 12)
                    if isvalu and (p.srcc & ins.dst):
                        req = max(req, 7)
            if p.kind in ('valu', 'trans', 'perm', 'rdlane'):
                vd = {r for r in p.dst if r[0] in ('v', 'a')}
                sd = {r for r in p.dst if r[0] in ('s', 'vcc')}
                if ins.kind == 'mfma' and vd & (ins.src | ins.srcc):
                    req = max(req, 2)
                if p.kind == 'trans' and isvalu and ins.kind != 'trans' and vd & ins.src:
                    req = max(req, 1)
                if ins.kind == 'perm' and vd & ins.src:
                    req = max(req, 2)
                if ins.kind == 'rdlane' and vd & ins.src:
                    req = max(req, 1)
                if isvalu and sd & ins.src:
                    req = max(req, 2)
                if ins.kind in ('vmem', 'dma', 'store') and sd & ins.src:
                    req = max(req, 5)
                if ins.kind == 'salu' and sd & ins.src:
                    req = max(req, 1)
            if p.kind == 'salu' and ('m0', 0) in p.dst and ins.kind == 'dma':
                req = max(req, 1)
            if p.kind == 'store' and isvalu and (p.src & ins.dst):
                req = max(req, 2)
            if req > dist:
                need = max(need, req - dist)
            dist += p.ws
            if dist >= 20:
                break
        return need

    def __call__(self, text):
        ins = parse(text)
        n = self._need(ins)
        if n > 0:
            self.nops_inserted += 1
            if self.warn:
                print('hazard nop %d before: %s' % (n, text))
            while n > 0:
                k = min(n, 16)
                nop = parse('s_nop %d' % (k - 1))
                self.hist.append(nop)
                self.lines.append('    s_nop %d' % (k - 1))
                n -= k
        self.hist.append(ins)
        self.lines.append('    ' + text)

    def fence(self):
        self('s_nop 15')
        self('s_nop 3')

    def text(self):
        return '\n'.join(self.lines) + '\n'
```

```python
import sys, os
sys.path.insert(0, os.path.dirname(os.path.abspath(__file__)))
from asmlib import Asm, parse

KNAME = 'standalone__softmax_full_causal__prompt_kernel'

O = 0
S = [64, 80]
NEGM = 96
Q = 112
F = 144
P = 176
T = 184
AK = 192
AV = 200
VOK0, VOK1, VOV = 204, 205, 206
L, SU, JJ, NINF = 207, 208, 209, 210
TMP = 211
LANE = 223
QOFF = 224
SADDR = 225
XADDR = 226
NV = 228

sW, sG, sWQ = 24, 25, 26
sI, s2I, sKEYA, sKEYB, sN = 27, 28, 29, 30, 31
sKQ, sVQ, sT = 32, 33, 34
sPOSK, sPOSV, sSTEP, sCNT = 35, 36, 37, 38
sHK = [39, 40]
sMASK, sTHR, sLO = 41, 42, 43
sRET2 = 44
sRET1 = 46
sT0 = 48
sW2K = 56
sROW = 57
sNW = 58
sTAU = 59
sPOS0 = 60
sROWA = 61
sRET3 = 62
sC = 64

LDS_V = 65536
LDS_STASH = 131072
LDS_BYTES = 163840
THR = 0x43800000
SCALE = 0.08838834764831845 * 1.4426950408889634

import struct
def f32bits(x):
    return struct.unpack('<I', struct.pack('<f', x))[0]

a = Asm()
uid = [0]
def newlab(p):
    uid[0] += 1
    return 'L_%s_%d' % (p, uid[0])

def vr(base, n):
    return 'v[%d:%d]' % (base, base + n - 1)

def assume(text):
    a.hist.append(parse(text))

def key_of(sptr, sdst):
    t0, t1, t2, d = sT0, sT0 + 1, sT0 + 2, sT0 + 3
    a(f's_sub_i32 s{d}, s{sptr}, s{s2I}')
    a(f's_and_b32 s{t1}, s{d}, 1')
    a(f's_cmp_eq_u32 s{t1}, 0')
    a(f's_cselect_b32 s{t1}, s{sKEYA}, s{sKEYB}')
    a(f's_lshr_b32 s{t2}, s{d}, 1')
    a(f's_lshl_b32 s{t2}, s{t2}, 6')
    a(f's_add_u32 s{t1}, s{t1}, s{t2}')
    a(f's_lshl_b32 s{t2}, s{d}, 6')
    a(f's_add_u32 s{t2}, s{t2}, s{sKEYB}')
    a(f's_sub_u32 s{t2}, s{t2}, 256')
    a(f's_cmp_lt_i32 s{d}, 4')
    a(f's_cselect_b32 s{t1}, s{t1}, s{t2}')
    a(f's_lshl_b32 s{t0}, s{sptr}, 6')
    a(f's_cmp_lt_i32 s{d}, 0')
    a(f's_cselect_b32 s{sdst}, s{t0}, s{t1}')

def issue(which):
    ptr = sKQ if which == 'K' else sVQ
    srd = 's[12:15]' if which == 'K' else 's[16:19]'
    skip = newlab('skipdma')
    k = sT0 + 4
    m = sT0 + 5
    a(f's_cmp_ge_u32 s{ptr}, s{sN}')
    a(f's_cbranch_scc1 {skip}')
    key_of(ptr, k)
    a(f's_lshl_b32 s{k}, s{k}, 8')
    a(f's_add_u32 s{k}, s{k}, s{sW2K}')
    a(f's_and_b32 s{m}, s{ptr}, 3')
    a(f's_lshl_b32 s{m}, s{m}, 14')
    a(f's_add_u32 s{m}, s{m}, s{sW2K}')
    if which == 'V':
        a(f's_add_u32 s{m}, s{m}, {LDS_V}')
    a(f's_mov_b32 m0, s{m}')
    a(f's_add_u32 s{ptr}, s{ptr}, 1')
    if which == 'K':
        a(f'buffer_load_dwordx4 v{VOK0}, {srd}, s{k} offen lds')
        a(f'buffer_load_dwordx4 v{VOK1}, {srd}, s{k} offen offset:1024 lds')
    else:
        a(f'buffer_load_dwordx4 v{VOV}, {srd}, s{k} offen lds')
        a(f'buffer_load_dwordx4 v{VOV}, {srd}, s{k} offen offset:1024 lds')
    a.label(skip)

def hk_inloop():
    l1 = newlab('hkw')
    a(f's_add_u32 s{sT0}, s{sT}, 2')
    a(f's_cmp_lt_u32 s{sT0}, s{sN}')
    a(f's_cbranch_scc1 {l1}')
    a('s_waitcnt vmcnt(0)')
    a.label(l1)
    a('s_waitcnt vmcnt(4)')
    a('s_barrier')
    issue('K')
    issue('V')
    a(f's_add_u32 s{sT}, s{sT}, 1')

def kread(j):
    a(f'ds_read_b128 {vr(F + 4 * j, 4)}, v{AK + j}')

def vread(j):
    t, db = j // 4, j % 4
    a(f'ds_read_b64_tr_b16 {vr(F + 4 * j, 2)}, v{AV + db} offset:{(16 * t) * 256}')
    a(f'ds_read_b64_tr_b16 {vr(F + 4 * j + 2, 2)}, v{AV + db} offset:{(16 * t + 8) * 256}')

def pv_mfma(j):
    t, db = j // 4, j % 4
    a(f'v_mfma_f32_32x32x16_bf16 {vr(O + 16 * db, 16)}, {vr(F + 4 * j, 4)}, {vr(P + 4 * t, 4)}, {vr(O + 16 * db, 16)}')

def qk_mfma(j, sb):
    c = NEGM if j == 0 else S[sb]
    a(f'v_mfma_f32_32x32x16_bf16 {vr(S[sb], 16)}, {vr(F + 4 * j, 4)}, {vr(Q + 4 * j, 4)}, {vr(c, 16)}')

def advance(which):
    pos = sPOSK if which == 'K' else sPOSV
    base, n = (AK, 8) if which == 'K' else (AV, 4)
    t0, t1 = sT0 + 6, sT0 + 7
    a(f's_add_u32 s{t0}, s{pos}, s{sSTEP}')
    a(f's_and_b32 s{t0}, s{t0}, 0xffff')
    a(f's_sub_u32 s{t1}, s{t0}, s{pos}')
    a(f's_mov_b32 s{pos}, s{t0}')
    ops = [f'v_add_u32 v{base + k}, s{t1}, v{base + k}' for k in range(n)]
    return ops

def setpos(which, snew):
    pos = sPOSK if which == 'K' else sPOSV
    base, n = (AK, 8) if which == 'K' else (AV, 4)
    t1 = sT0 + 7
    a(f's_sub_u32 s{t1}, s{snew}, s{pos}')
    a(f's_mov_b32 s{pos}, s{snew}')
    for k in range(n):
        a(f'v_add_u32 v{base + k}, s{t1}, v{base + k}')

def sm_plan(b):
    s = S[b]
    e = lambda r: f'v_exp_f32 v{T + r % 8}, v{s + r}'
    def ad(r):
        if r == 1:
            return f'v_add_f32 v{SU}, v{T}, v{T + 1}'
        return f'v_add_f32 v{SU}, v{SU}, v{T + r % 8}'
    c = lambda k: f'v_cvt_pk_bf16_f32 v{P + k}, v{T + (2 * k) % 8}, v{T + (2 * k + 1) % 8}'
    plan = {
        1: [e(0), e(1)], 2: [e(2), e(3), ad(1)], 3: [e(4), e(5), ad(2), c(0)],
        4: [e(6), e(7), ad(3), c(1)], 5: [e(8), ad(4), ad(5), c(2)], 6: [e(9), ad(6), ad(7), c(3)],
        7: [e(10), ad(8)], 8: [e(11), ad(9), c(4)], 9: [e(12), ad(10)], 10: [e(13), ad(11), c(5)],
        11: [e(14), ad(12)], 12: [e(15), ad(13), c(6)], 13: [ad(14)], 14: [ad(15), c(7)],
        15: [f'v_cmp_lt_f32 vcc, s{sTHR}, v{SU}'],
    }
    return plan

def mask_code(b):
    s = S[b]
    cr = [8 * (r // 4) + r % 4 for r in range(16)]
    pend = []
    for r in range(16):
        sp = sC + 2 * (r % 4)
        a(f'v_cmp_le_i32_e64 s[{sp}:{sp + 1}], {cr[r]}, v{JJ}')
        pend.append((r, sp))
        if len(pend) == 4:
            rr, spp = pend.pop(0)
            a(f'v_cndmask_b32_e64 v{s + rr}, v{NINF}, v{s + rr}, s[{spp}:{spp + 1}]')
    for rr, spp in pend:
        a(f'v_cndmask_b32_e64 v{s + rr}, v{NINF}, v{s + rr}, s[{spp}:{spp + 1}]')

rare_sites = []

def stage(b, has_prev, has_next, name):
    a.label(name)
    assume(f'v_mfma_f32_32x32x16_bf16 {vr(S[b], 16)}, {vr(F, 4)}, {vr(Q, 4)}, {vr(S[b], 16)}')
    assume('s_nop 1')
    assume(f'v_cvt_pk_bf16_f32 v{P + 7}, v{T}, v{T + 1}')
    plan = sm_plan(b)
    if has_next:
        skip = newlab('nohk')
        a(f's_cmp_eq_u32 s{sHK[b]}, 0')
        a(f's_cbranch_scc1 {skip}')
        hk_inloop()
        a.label(skip)
        for op in advance('K'):
            a(op)
    vadv = []
    if has_prev:
        vadv = advance('V')
        if not has_next:
            for op in vadv:
                a(op)
            vadv = []
    if not has_next:
        skipm = newlab('nomask')
        a(f's_cmp_eq_u32 s{sMASK}, 0')
        a(f's_cbranch_scc1 {skipm}')
        mask_code(b)
        a.label(skipm)
    if not has_prev:
        if has_next:
            for j in range(8):
                kread(j)
        else:
            for j in range(8):
                vread(j)
    for g in range(16):
        if g < 8:
            j = g
            if has_prev:
                if j % 2 == 0:
                    if has_next:
                        a(f's_waitcnt lgkmcnt({12 - j})')
                    else:
                        a(f's_waitcnt lgkmcnt({12})')
                pv_mfma(j)
                if has_next:
                    kread(j)
                else:
                    vread(j)
        else:
            j = g - 8
            if has_next:
                if j % 2 == 0:
                    a(f's_waitcnt lgkmcnt({6 + j})')
                qk_mfma(j, 1 - b)
                vread(j)
        for op in plan.get(g, []):
            a(op)
        if g == 6:
            for op in vadv:
                a(op)
    site = newlab('rare')
    back = newlab('back')
    a(f's_cbranch_vccnz {site}')
    a.label(back)
    a(f'v_add_f32 v{L}, v{L}, v{SU}')
    rare_sites.append((site, back, b, has_next))

def rare_body(b, fix):
    a.label(f'L_rarebody_{b}_{int(fix)}')
    a.fence()
    s = S[b]
    t0, t1, dl, f = TMP, TMP + 1, TMP + 2, TMP + 3
    a(f'v_max3_f32 v{t0}, v{s}, v{s + 1}, v{s + 2}')
    for r in range(3, 15, 2):
        a(f'v_max3_f32 v{t0}, v{t0}, v{s + r}, v{s + r + 1}')
    a(f'v_max_f32 v{t0}, v{t0}, v{s + 15}')
    a(f'v_mov_b32 v{t1}, v{t0}')
    a(f'v_permlane32_swap_b32 v{t0}, v{t1}')
    a(f'v_max3_f32 v{dl}, v{t0}, v{t1}, s{sLO}')
    a(f'v_max_f32 v{t0}, 0, v{dl}')
    a(f'v_exp_f32_e64 v{f}, -v{t0}')
    for r in range(16):
        a(f'v_sub_f32 v{NEGM + r}, v{NEGM + r}, v{dl}')
    for r in range(16):
        a(f'v_sub_f32 v{s + r}, v{s + r}, v{dl}')
    if fix:
        for r in range(16):
            a(f'v_sub_f32 v{S[1 - b] + r}, v{S[1 - b] + r}, v{dl}')
    a(f'v_mul_f32 v{L}, v{L}, v{f}')
    for r in range(64):
        a(f'v_mul_f32 v{O + r}, v{O + r}, v{f}')
    for half in range(2):
        for r in range(8):
            a(f'v_exp_f32 v{T + r}, v{s + 8 * half + r}')
        for r in range(8):
            if half == 0 and r == 0:
                continue
            if half == 0 and r == 1:
                a(f'v_add_f32 v{SU}, v{T}, v{T + 1}')
            else:
                a(f'v_add_f32 v{SU}, v{SU}, v{T + r}')
        for k in range(4):
            a(f'v_cvt_pk_bf16_f32 v{P + 4 * half + k}, v{T + 2 * k}, v{T + 2 * k + 1}')
    a(f's_mov_b32 s{sTHR}, {THR:#x}')
    a(f's_mov_b32 s{sLO}, 0')
    a('s_nop 1')
    a(f's_setpc_b64 s[{sRET2}:{sRET2 + 1}]')

def run_sub():
    a.label('L_RUN')
    a.fence()
    setpos('K', sPOS0)
    setpos('V', sPOS0)
    for j in range(8):
        kread(j)
    for j in range(8):
        if j % 2 == 0:
            a(f's_waitcnt lgkmcnt({6 - j})')
        qk_mfma(j, 0)
    a(f's_cmp_eq_u32 s{sCNT}, 1')
    a('s_cbranch_scc1 L_ONLY')
    stage(0, False, True, 'L_FIRST')
    a(f's_sub_u32 s{sCNT}, s{sCNT}, 2')
    a(f's_cmp_eq_u32 s{sCNT}, 0')
    a('s_cbranch_scc1 L_LAST1')
    stage(1, True, True, 'L_MID1')
    a(f's_sub_u32 s{sCNT}, s{sCNT}, 1')
    a(f's_cmp_eq_u32 s{sCNT}, 0')
    a('s_cbranch_scc1 L_LAST0')
    stage(0, True, True, 'L_MID0')
    a(f's_sub_u32 s{sCNT}, s{sCNT}, 1')
    a(f's_cmp_lg_u32 s{sCNT}, 0')
    a('s_cbranch_scc1 L_MID1')
    stage(1, True, False, 'L_LAST1')
    a('s_branch L_TAIL')
    stage(0, True, False, 'L_LAST0')
    a('s_branch L_TAIL')
    stage(0, False, False, 'L_ONLY')
    a.label('L_TAIL')
    assume(f'v_cvt_pk_bf16_f32 v{P + 7}, v{T}, v{T + 1}')
    assume(f'v_cvt_pk_bf16_f32 v{P}, v{T}, v{T + 1}')
    for j in range(8):
        if j % 2 == 0:
            a(f's_waitcnt lgkmcnt({12 - 2 * j})')
        pv_mfma(j)
    a.fence()
    a(f's_setpc_b64 s[{sRET1}:{sRET1 + 1}]')

def store_block(dbs, inv, srow, src=None):
    for n, db in enumerate(dbs):
        for h2 in range(2):
            base = O + 16 * db + 8 * h2
            c = 212 + 4 * ((2 * n + h2) % 2)
            for r in range(8):
                a(f'v_mul_f32 v{base + r}, v{base + r}, v{inv}')
            for k in range(4):
                a(f'v_cvt_pk_bf16_f32 v{c + k}, v{base + 2 * k}, v{base + 2 * k + 1}')
            a(f'v_permlane32_swap_b32 v{c}, v{c + 2}')
            a(f'v_permlane32_swap_b32 v{c + 1}, v{c + 3}')
            a(f'buffer_store_dwordx4 {vr(c, 4)}, v{QOFF}, s[20:23], s{srow} offen offset:{db * 64 + h2 * 32}')

def reset_state():
    for r in range(64):
        a(f'v_mov_b32 v{O + r}, 0')
    for r in range(16):
        a(f'v_mov_b32 v{NEGM + r}, 0')
    a(f'v_mov_b32 v{L}, 0')
    a(f's_mov_b32 s{sTHR}, -1.0')
    a(f's_mov_b32 s{sLO}, 0xff800000')

def b_epilogue_sub():
    a.label('L_BEPI')
    a.fence()
    t0, t1 = TMP, TMP + 1
    a(f'v_mov_b32 v{t0}, v{L}')
    a(f'v_mov_b32 v{t1}, v{L}')
    a(f'v_permlane32_swap_b32 v{t0}, v{t1}')
    a(f'v_add_f32 v{t0}, v{t0}, v{t1}')
    a(f'v_rcp_f32 v{t0}, v{t0}')
    store_block([0, 1, 2, 3], t0, sROW)
    for s_ in range(8):
        a(f'ds_read_b128 {vr(Q + 4 * s_, 4)}, v{SADDR} offset:{1024 * s_}')
    a('s_nop 1')
    reset_state()
    a(f's_mov_b32 s{sROW}, s{sROWA}')
    a('s_waitcnt lgkmcnt(0)')
    a(f's_setpc_b64 s[{sRET3}:{sRET3 + 1}]')

def call(label, ret):
    a(f's_call_b64 s[{ret}:{ret + 1}], {label}')

a.label(KNAME)
a('s_cmp_ge_u32 s2, 256')
a('s_cbranch_scc1 L_END')
a('s_load_dwordx4 s[4:7], s[0:1], 0')
a('s_load_dwordx4 s[48:51], s[0:1], 16')
a(f'v_and_b32 v{LANE}, 63, v0')
a(f'v_lshrrev_b32 v{TMP}, 6, v0')
a(f'v_readfirstlane_b32 s{sW}, v{TMP}')
a('s_and_b32 s52, s2, 7')
a('s_lshr_b32 s53, s2, 3')
a('s_and_b32 s54, s53, 3')
a('s_lshl_b32 s52, s52, 2')
a('s_add_u32 s52, s52, s54')
a(f's_lshr_b32 s{sI}, s53, 2')
a('s_lshl_b32 s52, s52, 19')
a(f's_lshr_b32 s{sG}, s{sW}, 2')
a(f's_and_b32 s{sWQ}, s{sW}, 3')
a(f's_lshl_b32 s{s2I}, s{sI}, 1')
a(f's_lshl_b32 s{sKEYB}, s{sI}, 7')
a(f's_sub_u32 s{sKEYA}, 1920, s{sKEYB}')
a(f's_sub_u32 s{sN}, 34, s{s2I}')
a(f's_lshl_b32 s{sW2K}, s{sW}, 11')
a(f's_sub_u32 s53, 3, s{sWQ}')
a('s_lshl_b32 s53, s53, 5')
a(f's_add_u32 s53, s53, s{sKEYA}')
a(f's_lshl_b32 s{sROWA}, s53, 8')
a(f's_lshl_b32 s53, s{sWQ}, 5')
a(f's_add_u32 s53, s53, s{sKEYB}')
a('s_lshl_b32 s53, s53, 8')
a(f's_cmp_eq_u32 s{sG}, 0')
a(f's_cselect_b32 s{sROW}, s{sROWA}, s53')
a(f's_sub_u32 s53, 4, s{sWQ}')
a(f's_add_u32 s54, s{sWQ}, 1')
a(f's_cselect_b32 s{sNW}, s53, s54')
a(f's_mov_b32 s{sKQ}, 0')
a(f's_mov_b32 s{sVQ}, 0')
a(f's_mov_b32 s{sPOSK}, 0')
a(f's_mov_b32 s{sPOSV}, 0')
l32, h, l16, g4, r4, c4 = TMP, TMP + 1, TMP + 2, TMP + 3, TMP + 4, TMP + 5
x, y = TMP + 6, TMP + 7
a(f'v_and_b32 v{l32}, 31, v{LANE}')
a(f'v_lshrrev_b32 v{h}, 5, v{LANE}')
a(f'v_and_b32 v{l16}, 15, v{LANE}')
a(f'v_lshrrev_b32 v{g4}, 4, v{LANE}')
a(f'v_bfe_u32 v{r4}, v{LANE}, 2, 2')
a(f'v_and_b32 v{c4}, 3, v{LANE}')
a(f'v_lshlrev_b32 v{x}, 8, v{l32}')
a(f'v_lshl_add_u32 v{QOFF}, v{h}, 4, v{x}')
a('s_waitcnt lgkmcnt(0)')
for base, lo, hi in ((8, 4, 5), (12, 6, 7), (16, 48, 49), (20, 50, 51)):
    a(f's_add_u32 s{base}, s{lo}, s52')
    a(f's_addc_u32 s{base + 1}, s{hi}, 0')
    a(f's_mov_b32 s{base + 2}, 0x80000')
    a(f's_mov_b32 s{base + 3}, 0x00020000')
for s_ in range(8):
    a(f'buffer_load_dwordx4 {vr(Q + 4 * s_, 4)}, v{QOFF}, s[8:11], s{sROW} offen offset:{32 * s_}')
a(f's_and_b32 s53, s{sW}, 1')
a('s_lshl_b32 s53, s53, 3')
a(f'v_add_u32 v{y}, s53, v{g4}')
a(f'v_xor_b32 v{y}, v{y}, v{l16}')
a(f'v_lshlrev_b32 v{x}, 8, v{g4}')
a(f'v_lshl_add_u32 v{VOK0}, v{y}, 4, v{x}')
a(f'v_xor_b32 v{y}, 4, v{y}')
a(f'v_lshl_add_u32 v{VOK1}, v{y}, 4, v{x}')
a(f'v_lshlrev_b32 v{y}, 2, v{g4}')
a(f'v_xor_b32 v{y}, v{y}, v{l16}')
a(f'v_lshl_add_u32 v{VOV}, v{y}, 4, v{x}')
issue('K'); issue('K'); issue('V'); issue('K'); issue('V')
a(f'v_lshlrev_b32 v{x}, 8, v{l32}')
for s_ in range(8):
    a(f'v_add_u32 v{y}, {2 * s_}, v{h}')
    a(f'v_xor_b32 v{y}, v{y}, v{l16}')
    a(f'v_lshl_add_u32 v{AK + s_}, v{y}, 4, v{x}')
a(f'v_lshl_add_u32 v{x}, v{h}, 2, v{r4}')
a(f'v_lshlrev_b32 v{x}, 8, v{x}')
a(f'v_add_u32 v{x}, {LDS_V}, v{x}')
a(f'v_and_b32 v{y}, 1, v{c4}')
a(f'v_lshl_add_u32 v{x}, v{y}, 3, v{x}')
a(f'v_and_b32 v{y}, 1, v{g4}')
a(f'v_lshl_add_u32 v{x}, v{y}, 5, v{x}')
a(f'v_lshrrev_b32 v{y}, 1, v{c4}')
a(f'v_lshl_add_u32 v{x}, v{y}, 4, v{x}')
for db in range(4):
    a(f'v_xor_b32 v{y}, {db}, v{r4}')
    a(f'v_lshl_add_u32 v{AV + db}, v{y}, 6, v{x}')
a(f'v_lshlrev_b32 v{y}, 2, v{h}')
a(f'v_sub_u32 v{JJ}, v{l32}, v{y}')
a(f'v_mov_b32 v{NINF}, 0xff800000')
a(f's_lshl_b32 s53, s{sWQ}, 13')
a(f's_add_u32 s53, s53, {LDS_STASH}')
a(f'v_lshl_add_u32 v{SADDR}, v{LANE}, 4, s53')
a(f'v_lshlrev_b32 v{XADDR}, 4, v{LANE}')
reset_state()
a('s_waitcnt vmcnt(10)')
a(f's_mov_b32 s53, {f32bits(SCALE):#x}')
for r in range(32):
    t0, t1 = TMP + (2 * r) % 8, TMP + (2 * r + 1) % 8
    a(f'v_lshlrev_b32 v{t0}, 16, v{Q + r}')
    a(f'v_and_b32 v{t1}, 0xffff0000, v{Q + r}')
    a(f'v_mul_f32 v{t0}, s53, v{t0}')
    a(f'v_mul_f32 v{t1}, s53, v{t1}')
    a(f'v_cvt_pk_bf16_f32 v{Q + r}, v{t0}, v{t1}')
a(f's_cmp_lg_u32 s{sG}, 0')
a('s_cbranch_scc1 L_NOSTASH')
for s_ in range(8):
    a(f'ds_write_b128 v{SADDR}, {vr(Q + 4 * s_, 4)} offset:{1024 * s_}')
a('s_waitcnt lgkmcnt(0)')
a.label('L_NOSTASH')
a(f's_cmp_eq_u32 s{sI}, 0')
a('s_cbranch_scc1 L_G1')
a('s_waitcnt vmcnt(4)')
a('s_barrier')
issue('K'); issue('V')
a(f's_mov_b32 s{sT}, 1')
a(f's_lshl_b32 s{sCNT}, s{sI}, 2')
a(f's_mov_b32 s{sPOS0}, 0')
a(f's_mov_b32 s{sSTEP}, 8192')
a(f's_mov_b32 s{sHK[0]}, 0')
a(f's_mov_b32 s{sHK[1]}, 1')
a(f's_mov_b32 s{sMASK}, 0')
call('L_RUN', sRET1)
a.label('L_G1')
a('s_waitcnt vmcnt(0)')
a('s_barrier')
issue('V'); issue('K'); issue('V')
a(f's_min_u32 s{sCNT}, s{sNW}, 2')
a(f's_add_u32 s{sPOS0}, s{s2I}, s{sG}')
a(f's_and_b32 s{sPOS0}, s{sPOS0}, 3')
a(f's_lshl_b32 s{sPOS0}, s{sPOS0}, 14')
a(f's_mov_b32 s{sSTEP}, 8192')
a(f's_mov_b32 s{sHK[0]}, 0')
a(f's_mov_b32 s{sHK[1]}, 0')
a(f's_cmp_le_u32 s{sNW}, 2')
a(f's_cselect_b32 s{sMASK}, 1, 0')
call('L_RUN', sRET1)
a('s_waitcnt vmcnt(0)')
a(f's_cmp_eq_u32 s{sG}, 0')
a('s_cbranch_scc1 L_G2')
a(f's_cmp_gt_u32 s{sNW}, 2')
a('s_cbranch_scc1 L_G2')
call('L_BEPI', sRET3)
a.label('L_G2')
a('s_barrier')
issue('K'); issue('V'); issue('K'); issue('V')
a(f's_cmp_le_u32 s{sNW}, 2')
a('s_cbranch_scc1 L_G2SKIP')
a(f's_sub_u32 s{sCNT}, s{sNW}, 2')
a(f's_add_u32 s{sPOS0}, s{s2I}, s{sG}')
a(f's_add_u32 s{sPOS0}, s{sPOS0}, 2')
a(f's_and_b32 s{sPOS0}, s{sPOS0}, 3')
a(f's_lshl_b32 s{sPOS0}, s{sPOS0}, 14')
a(f's_mov_b32 s{sMASK}, 1')
call('L_RUN', sRET1)
a('s_waitcnt vmcnt(0)')
a(f's_cmp_eq_u32 s{sG}, 0')
a('s_cbranch_scc1 L_S')
call('L_BEPI', sRET3)
a('s_branch L_S')
a.label('L_G2SKIP')
a('s_waitcnt vmcnt(0)')
a.label('L_S')
a('s_barrier')
issue('K'); issue('V'); issue('K')
a(f's_add_u32 s{sT}, s{s2I}, 5')
a(f's_lshl_b32 s{sCNT}, s{sI}, 2')
a(f's_sub_u32 s{sCNT}, 30, s{sCNT}')
a(f's_and_b32 s{sPOS0}, s{s2I}, 3')
a(f's_lshl_b32 s{sPOS0}, s{sPOS0}, 14')
a(f's_lshl_b32 s53, s{sG}, 13')
a(f's_add_u32 s{sPOS0}, s{sPOS0}, s53')
a(f's_mov_b32 s{sSTEP}, 16384')
a(f's_mov_b32 s{sHK[0]}, 1')
a(f's_mov_b32 s{sHK[1]}, 1')
a(f's_mov_b32 s{sMASK}, 0')
call('L_RUN', sRET1)
a('s_waitcnt vmcnt(0)')
a('s_barrier')
a(f's_lshl_b32 s53, s{sW}, 13')
a(f'v_add_u32 v{TMP}, s53, v{XADDR}')
a('s_xor_b32 s54, s53, 0x8000')
a(f'v_add_u32 v{TMP + 1}, s54, v{XADDR}')
a(f's_lshl_b32 s53, s{sW}, 10')
a(f's_add_u32 s53, s53, {LDS_V}')
a(f'v_add_u32 v{TMP + 2}, s53, v{XADDR}')
a('s_xor_b32 s54, s53, 0x1000')
a(f'v_add_u32 v{TMP + 3}, s54, v{XADDR}')
a(f'v_mov_b32 v{S[0]}, v{NEGM}')
a(f'v_mov_b32 v{S[0] + 1}, v{L}')
a(f'ds_write_b64 v{TMP + 2}, v[{S[0]}:{S[0] + 1}]')
a(f's_cmp_eq_u32 s{sG}, 0')
a('s_cbranch_scc0 L_MRG_Y')
for k in range(8):
    a(f'ds_write_b128 v{TMP}, {vr(O + 32 + 4 * k, 4)} offset:{1024 * k}')
a('s_waitcnt lgkmcnt(0)')
a('s_barrier')
for k in range(8):
    a(f'ds_read_b128 {vr(O + 32 + 4 * k, 4)}, v{TMP + 1} offset:{1024 * k}')
a('s_branch L_MRG_J')
a.label('L_MRG_Y')
for k in range(8):
    a(f'ds_write_b128 v{TMP}, {vr(O + 4 * k, 4)} offset:{1024 * k}')
a('s_waitcnt lgkmcnt(0)')
a('s_barrier')
for k in range(8):
    a(f'ds_read_b128 {vr(O + 4 * k, 4)}, v{TMP + 1} offset:{1024 * k}')
a.label('L_MRG_J')
a(f'ds_read_b64 v[{S[0] + 2}:{S[0] + 3}], v{TMP + 3}')
a('s_waitcnt lgkmcnt(0)')
nm, fo, fp, lt, t1 = S[1], S[1] + 1, S[1] + 2, S[1] + 3, S[1] + 4
a(f'v_min_f32 v{nm}, v{S[0]}, v{S[0] + 2}')
a(f'v_sub_f32 v{fo}, v{nm}, v{S[0]}')
a(f'v_sub_f32 v{fp}, v{nm}, v{S[0] + 2}')
a(f'v_exp_f32 v{fo}, v{fo}')
a(f'v_exp_f32 v{fp}, v{fp}')
a(f'v_mul_f32 v{lt}, v{fo}, v{S[0] + 1}')
a(f'v_fma_f32 v{lt}, v{fp}, v{S[0] + 3}, v{lt}')
a(f'v_mov_b32 v{t1}, v{lt}')
a(f'v_permlane32_swap_b32 v{lt}, v{t1}')
a(f'v_add_f32 v{lt}, v{lt}, v{t1}')
a(f'v_rcp_f32 v{lt}, v{lt}')
a(f'v_mul_f32 v{fo}, v{fo}, v{lt}')
a(f'v_mul_f32 v{fp}, v{fp}, v{lt}')
a(f'v_mov_b32 v{t1}, 1.0')
a(f's_cmp_eq_u32 s{sG}, 0')
a('s_cbranch_scc0 L_FIN_Y')
for r in range(32):
    a(f'v_mul_f32 v{O + r}, v{O + r}, v{fo}')
    a(f'v_fma_f32 v{O + r}, v{O + 32 + r}, v{fp}, v{O + r}')
store_block([0, 1], t1, sROW)
a('s_endpgm')
a.label('L_FIN_Y')
for r in range(32):
    a(f'v_mul_f32 v{O + 32 + r}, v{O + 32 + r}, v{fo}')
    a(f'v_fma_f32 v{O + 32 + r}, v{O + r}, v{fp}, v{O + 32 + r}')
store_block([2, 3], t1, sROW)
a.label('L_END')
a('s_endpgm')
run_sub()
b_epilogue_sub()
for site, back, b, fx in rare_sites:
    a.label(site)
    call(f'L_rarebody_{b}_{int(fx)}', sRET2)
    a(f's_branch {back}')
for b in range(2):
    for fx in (False, True):
        rare_body(b, fx)

hdr = f"""; causal flash-attention forward, B=1 H=32 S=2048 D=128 bf16 (generated by gen/gen1.py)
; @launch grid=(256,1,1) block=(512,1,1) lds={LDS_BYTES}
.amdgcn_target "amdgcn-amd-amdhsa--gfx950"
.text
.globl {KNAME}
.p2align 8
.type {KNAME},@function
"""
ftr = f"""
.section .rodata,"a"
.p2align 6
.amdhsa_kernel {KNAME}
  .amdhsa_next_free_vgpr {NV}
  .amdhsa_next_free_sgpr 96
  .amdhsa_accum_offset {NV}
  .amdhsa_group_segment_fixed_size 0
  .amdhsa_kernarg_size 48
  .amdhsa_user_sgpr_count 2
  .amdhsa_user_sgpr_kernarg_segment_ptr 1
  .amdhsa_system_sgpr_workgroup_id_x 1
.end_amdhsa_kernel
"""
out = sys.argv[1] if len(sys.argv) > 1 else 'standalone__softmax_full_causal__prompt.s'
open(out, 'w').write(hdr + a.text() + ftr)
print('wrote', out, 'lines', len(a.lines), 'auto-nops', a.nops_inserted)
```

```python
import sys, os, struct
sys.path.insert(0, os.path.dirname(os.path.abspath(__file__)))
from asmlib import Asm, parse

KNAME = 'standalone__softmax_full_causal__prompt_kernel'
ENV = os.environ.get

O = 0
S = [64, 80]
NEGM = 96
Q = 112
F = 144
P = 176
T = 184
AK = 192
AV = 200
VOK0, VOK1, VOV = 204, 205, 206
L, SU, JJ, NINF = 207, 208, 209, 210
TMP = 211
LANE = 223
QOFF = 224
TAB = 225
XADDR = 226
NV = 228

sW, sG, sWQ = 24, 25, 26
sI, s2I, sKEYA, sKEYB, sN = 27, 28, 29, 30, 31
sKQ, sVQ, sFULL = 32, 33, 34
sPOSK, sPOSV, sNS, sCNT = 35, 36, 37, 38
sHKS, sHKM = 39, 40
sMASK, sTHR, sLO = 41, 42, 43
sRET2 = 44
sRET1 = 46
sT0 = 48
sW2K = 56
sROW = 57
sNW = 58
sKLIM, sVLIM = 59, 60
sROWB = 61
sMK, sMV = 62, 63
sC = 64
sKOFF, sVOFF = 72, 73

LDS_V = 65536
LDS_STASH = 131072
LDS_BYTES = 163840
THR = 0x43800000
SCALE = 0.08838834764831845 * 1.4426950408889634

def f32bits(x):
    return struct.unpack('<I', struct.pack('<f', x))[0]

a = Asm()
_orig_call = Asm.__call__
in_stage = [False]
def _filt(self, text):
    if in_stage[0]:
        if ENV('NOWAIT') and text.startswith('s_waitcnt lgkm'):
            return
        if ENV('NOLDS') and text.startswith('ds_read'):
            return
        if ENV('NOEXP') and text.startswith('v_exp'):
            return
        if ENV('NOADD') and text.startswith('v_add_f32'):
            return
        if ENV('NOCVT') and text.startswith('v_cvt'):
            return
        if ENV('NOPV') and text.startswith('v_mfma') and text.split()[1].startswith('v[') and int(text.split()[1][2:].split(':')[0]) < 64:
            return
    _orig_call(self, text)
Asm.__call__ = _filt
uid = [0]
def newlab(p):
    uid[0] += 1
    return 'L_%s_%d' % (p, uid[0])

def vr(base, n):
    return 'v[%d:%d]' % (base, base + n - 1)

def assume(text):
    a.hist.append(parse(text))

STAMPS = ENV('STAMPS')
stamp_n = [0]
def stamp():
    if not STAMPS:
        return
    k = stamp_n[0]
    stamp_n[0] += 1
    a('s_waitcnt lgkmcnt(0)')
    a('s_memtime s[76:77]')
    a('s_waitcnt lgkmcnt(0)')
    a(f's_mov_b32 s{80 + k}, s76')
    if k == 0:
        a('s_memrealtime s[76:77]')
        a('s_waitcnt lgkmcnt(0)')
        a('s_mov_b32 s94, s76')
def stamp_store():
    if not STAMPS:
        return
    stamp()
    a('s_memrealtime s[76:77]')
    a('s_waitcnt lgkmcnt(0)')
    a('s_mov_b32 s95, s76')
    a('s_load_dwordx2 s[76:77], s[0:1], 40')
    a('s_waitcnt lgkmcnt(0)')
    a('s_mov_b32 s78, 0x10000000')
    a('s_mov_b32 s79, 0x00020000')
    a(f's_lshl_b32 s53, s2, 3')
    a(f's_add_u32 s53, s53, s{sW}')
    a('s_lshl_b32 s53, s53, 6')
    a(f'v_mov_b32 v{TMP}, 0')
    for k in range(stamp_n[0]):
        a(f'v_mov_b32 v{TMP + 1}, s{80 + k}')
        a(f'buffer_store_dword v{TMP + 1}, v{TMP}, s[76:79], s53 offen offset:{4 * k}')
        a('s_nop 2')
    for k in (14, 15):
        a(f'v_mov_b32 v{TMP + 1}, s{80 + k}')
        a(f'buffer_store_dword v{TMP + 1}, v{TMP}, s[76:79], s53 offen offset:{4 * k}')
        a('s_nop 2')

def dma_pair(which, soff):
    if which == 'K':
        a(f'buffer_load_dwordx4 v{VOK0}, s[12:15], s{soff} offen lds')
        a(f'buffer_load_dwordx4 v{VOK1}, s[12:15], s{soff} offen offset:1024 lds')
    else:
        a(f'buffer_load_dwordx4 v{VOV}, s[16:19], s{soff} offen lds')
        a(f'buffer_load_dwordx4 v{VOV}, s[16:19], s{soff} offen offset:1024 lds')

def issue(which):
    ptr, m, off = (sKQ, sMK, sKOFF) if which == 'K' else (sVQ, sMV, sVOFF)
    skip = newlab('skipdma')
    a(f'v_readlane_b32 s{off}, v{TAB}, s{ptr}')
    a(f's_cmp_ge_u32 s{ptr}, s{sN}')
    a(f's_cbranch_scc1 {skip}')
    a(f's_mov_b32 m0, s{m}')
    a(f's_add_u32 s{ptr}, s{ptr}, 1')
    a(f's_add_u32 s{m}, s{m}, 0x4000')
    if which == 'K':
        a(f's_and_b32 s{m}, s{m}, 0xffff')
    else:
        a(f's_and_b32 s{m}, s{m}, 0xffff')
        a(f's_or_b32 s{m}, s{m}, 0x10000')
    dma_pair(which, off)
    a.label(skip)

def hk_parts(dma):
    sync = ['s_waitcnt vmcnt(4)']
    if not ENV('NOBAR'):
        sync.append('s_barrier')
    post = []
    if dma:
        d = lambda t: [] if ENV('NODMA') else [t]
        post = [
            [f's_mov_b32 m0, s{sMK}', f's_add_u32 s{sMK}, s{sMK}, 0x4000'] + d(f'buffer_load_dwordx4 v{VOK0}, s[12:15], s{sKOFF} offen lds'),
            [f's_and_b32 s{sMK}, s{sMK}, 0xffff'] + d(f'buffer_load_dwordx4 v{VOK1}, s[12:15], s{sKOFF} offen offset:1024 lds'),
            [f's_mov_b32 m0, s{sMV}', f's_add_u32 s{sMV}, s{sMV}, 0x4000'] + d(f'buffer_load_dwordx4 v{VOV}, s[16:19], s{sVOFF} offen lds'),
            [f's_and_b32 s{sMV}, s{sMV}, 0xffff'] + d(f'buffer_load_dwordx4 v{VOV}, s[16:19], s{sVOFF} offen offset:1024 lds'),
            [f's_or_b32 s{sMV}, s{sMV}, 0x10000', f's_add_u32 s{sKQ}, s{sKQ}, 1'],
            [f's_add_u32 s{sVQ}, s{sVQ}, 1', f'v_readlane_b32 s{sKOFF}, v{TAB}, s{sKQ}'],
            [f'v_readlane_b32 s{sVOFF}, v{TAB}, s{sVQ}'],
        ]
    return sync, post

def load_offs():
    a(f'v_readlane_b32 s{sKOFF}, v{TAB}, s{sKQ}')
    a(f'v_readlane_b32 s{sVOFF}, v{TAB}, s{sVQ}')

def kread(j, off):
    a(f'ds_read_b128 {vr(F + 4 * j, 4)}, v{AK + j} offset:{off}')

def vread(j, off):
    t, db = j // 4, j % 4
    a(f'ds_read_b64_tr_b16 {vr(F + 4 * j, 2)}, v{AV + db} offset:{off + (16 * t) * 256}')
    a(f'ds_read_b64_tr_b16 {vr(F + 4 * j + 2, 2)}, v{AV + db} offset:{off + (16 * t + 8) * 256}')

def pv_mfma(j):
    t, db = j // 4, j % 4
    a(f'v_mfma_f32_32x32x16_bf16 {vr(O + 16 * db, 16)}, {vr(F + 4 * j, 4)}, {vr(P + 4 * t, 4)}, {vr(O + 16 * db, 16)}')

def qk_mfma(j, sb):
    c = NEGM if j == 0 else S[sb]
    a(f'v_mfma_f32_32x32x16_bf16 {vr(S[sb], 16)}, {vr(F + 4 * j, 4)}, {vr(Q + 4 * j, 4)}, {vr(c, 16)}')

def setpos(snew):
    t1 = sT0 + 7
    for pos, base, n in ((sPOSK, AK, 8), (sPOSV, AV, 4)):
        a(f's_sub_u32 s{t1}, s{snew}, s{pos}')
        a(f's_mov_b32 s{pos}, s{snew}')
        for k in range(n):
            a(f'v_add_u32 v{base + k}, s{t1}, v{base + k}')

def toggle_ops(which):
    pos, base, n = (sPOSK, AK, 8) if which == 'K' else (sPOSV, AV, 4)
    return [f's_xor_b32 s{pos}, s{pos}, 0x8000'] + [f'v_xor_b32 v{base + k}, 0x8000, v{base + k}' for k in range(n)]

def sm_plan(b):
    s = S[b]
    e = lambda r: f'v_exp_f32 v{T + r % 8}, v{s + r}'
    def ad(r):
        if r == 1:
            return f'v_add_f32 v{SU}, v{T}, v{T + 1}'
        return f'v_add_f32 v{SU}, v{SU}, v{T + r % 8}'
    c = lambda k: f'v_cvt_pk_bf16_f32 v{P + k}, v{T + (2 * k) % 8}, v{T + (2 * k + 1) % 8}'
    plan = {
        1: [e(0), e(1)], 2: [e(2), e(3), ad(1)], 3: [e(4), e(5), ad(2), c(0)],
        4: [e(6), e(7), ad(3), c(1)], 5: [e(8), ad(4), ad(5), c(2)], 6: [e(9), ad(6), ad(7), c(3)],
        7: [e(10), ad(8)], 8: [e(11), ad(9), c(4)], 9: [e(12), ad(10)], 10: [e(13), ad(11), c(5)],
        11: [e(14), ad(12)], 12: [e(15), ad(13), c(6)], 13: [ad(14)], 14: [ad(15), c(7)],
        15: [f'v_cmp_lt_f32 vcc, s{sTHR}, v{SU}'],
    }
    return plan

def mask_code(b):
    s = S[b]
    cr = [8 * (r // 4) + r % 4 for r in range(16)]
    pend = []
    for r in range(16):
        sp = sC + 2 * (r % 4)
        a(f'v_cmp_le_i32_e64 s[{sp}:{sp + 1}], {cr[r]}, v{JJ}')
        pend.append((r, sp))
        if len(pend) == 4:
            rr, spp = pend.pop(0)
            a(f'v_cndmask_b32_e64 v{s + rr}, v{NINF}, v{s + rr}, s[{spp}:{spp + 1}]')
    for rr, spp in pend:
        a(f'v_cndmask_b32_e64 v{s + rr}, v{NINF}, v{s + rr}, s[{spp}:{spp + 1}]')

rare_sites = []

class DSQ:
    def __init__(self, init):
        self.q = list(init)
        self.done = 0
    def push(self, tag):
        self.q.append(tag)
    def need(self, tags):
        last = max([i for i, t in enumerate(self.q) if t in tags], default=-1)
        if last < self.done:
            return
        n = len(self.q) - 1 - last
        assert n <= 15
        a(f's_waitcnt lgkmcnt({n})')
        self.done = last + 1

def stage(name, b, has_prev, has_next, koff, voff, hk=None, ylate=False,
          ktog=False, vtog=False, maskable=False):
    a.label(name)
    in_stage[0] = True
    assume(f'v_mfma_f32_32x32x16_bf16 {vr(S[b], 16)}, {vr(F, 4)}, {vr(Q, 4)}, {vr(S[b], 16)}')
    assume('s_nop 1')
    assume(f'v_cvt_pk_bf16_f32 v{P + 7}, v{T}, v{T + 1}')
    plan = sm_plan(b)
    dq = DSQ([('V', j) for j in range(8) for _ in range(2)] if has_prev else [])
    sync, post = hk_parts(hk == 'dma') if (hk and not ENV('NOHK')) else ([], [])
    ylate = ylate and has_prev and bool(sync)
    bar_gap = 4 if ylate else 0
    def kr(j):
        kread(j, koff); dq.push(('K', j))
    def vrd(j):
        vread(j, voff); dq.push(('V2', j)); dq.push(('V2', j))
    if ktog:
        for op in toggle_ops('K'):
            a(op)
    vt = toggle_ops('V') if vtog else []
    if not has_next:
        for op in vt:
            a(op)
        vt = []
    if not ylate:
        for op in sync:
            a(op)
    if maskable:
        skipm = newlab('nomask')
        a(f's_cmp_eq_u32 s{sMASK}, 0')
        a(f's_cbranch_scc1 {skipm}')
        mask_code(b)
        a.label(skipm)
    if not has_prev:
        for j in range(8):
            if has_next:
                kr(j)
            else:
                vrd(j)
    g1reads = {g: [g] for g in range(8)}
    if ylate:
        g1reads = {4: [0, 1], 5: [2, 3], 6: [4, 5], 7: [6, 7]}
    for g in range(16):
        if ylate and g == bar_gap:
            for op in sync:
                a(op)
        if g < 8:
            j = g
            if has_prev:
                if j % 2 == 0:
                    dq.need({('V', j), ('V', j + 1)})
                pv_mfma(j)
                for jj in g1reads.get(g, []):
                    if has_next:
                        kr(jj)
                    else:
                        vrd(jj)
        else:
            j = g - 8
            if has_next:
                if j % 2 == 0:
                    dq.need({('K', j), ('K', j + 1)})
                qk_mfma(j, 1 - b)
                vrd(j)
        k = g - bar_gap
        if 0 <= k < len(post):
            for op in post[k]:
                a(op)
        for op in plan.get(g, []):
            a(op)
        if g == 6:
            for op in vt:
                a(op)
    site = newlab('rare')
    back = newlab('back')
    a(f's_cbranch_vccnz {site}')
    a.label(back)
    a(f'v_add_f32 v{L}, v{L}, v{SU}')
    rare_sites.append((site, back, b, has_next))
    in_stage[0] = False

def head(koff):
    a.fence()
    for j in range(8):
        kread(j, koff)
    for j in range(8):
        if j % 2 == 0:
            a(f's_waitcnt lgkmcnt({6 - j})')
        qk_mfma(j, 0)

def tail():
    assume(f'v_cvt_pk_bf16_f32 v{P + 7}, v{T}, v{T + 1}')
    assume(f'v_cvt_pk_bf16_f32 v{P}, v{T}, v{T + 1}')
    for j in range(8):
        if j % 2 == 0:
            a(f's_waitcnt lgkmcnt({12 - 2 * j})')
        pv_mfma(j)
    a.fence()

def rare_body(b, fix):
    a.label(f'L_rarebody_{b}_{int(fix)}')
    a.fence()
    s = S[b]
    t0, t1, dl, f = TMP, TMP + 1, TMP + 2, TMP + 3
    a(f'v_max3_f32 v{t0}, v{s}, v{s + 1}, v{s + 2}')
    for r in range(3, 15, 2):
        a(f'v_max3_f32 v{t0}, v{t0}, v{s + r}, v{s + r + 1}')
    a(f'v_max_f32 v{t0}, v{t0}, v{s + 15}')
    a(f'v_mov_b32 v{t1}, v{t0}')
    a(f'v_permlane32_swap_b32 v{t0}, v{t1}')
    a(f'v_max3_f32 v{dl}, v{t0}, v{t1}, s{sLO}')
    a(f'v_max_f32 v{t0}, 0, v{dl}')
    a(f'v_exp_f32_e64 v{f}, -v{t0}')
    for r in range(16):
        a(f'v_sub_f32 v{NEGM + r}, v{NEGM + r}, v{dl}')
    for r in range(16):
        a(f'v_sub_f32 v{s + r}, v{s + r}, v{dl}')
    if fix:
        for r in range(16):
            a(f'v_sub_f32 v{S[1 - b] + r}, v{S[1 - b] + r}, v{dl}')
    sk = newlab('norescale')
    a(f's_cmp_lg_u32 s{sLO}, 0')
    a(f's_cbranch_scc1 {sk}')
    a(f'v_mul_f32 v{L}, v{L}, v{f}')
    for r in range(64):
        a(f'v_mul_f32 v{O + r}, v{O + r}, v{f}')
    a.label(sk)
    for half in range(2):
        for r in range(8):
            a(f'v_exp_f32 v{T + r}, v{s + 8 * half + r}')
        for r in range(8):
            if half == 0 and r == 0:
                continue
            if half == 0 and r == 1:
                a(f'v_add_f32 v{SU}, v{T}, v{T + 1}')
            else:
                a(f'v_add_f32 v{SU}, v{SU}, v{T + r}')
        for k in range(4):
            a(f'v_cvt_pk_bf16_f32 v{P + 4 * half + k}, v{T + 2 * k}, v{T + 2 * k + 1}')
    a(f's_mov_b32 s{sTHR}, {THR:#x}')
    a(f's_mov_b32 s{sLO}, 0')
    a('s_nop 1')
    a(f's_setpc_b64 s[{sRET2}:{sRET2 + 1}]')

def store_block(dbs, inv, srow):
    for n, db in enumerate(dbs):
        for h2 in range(2):
            base = O + 16 * db + 8 * h2
            c = 212 + 4 * ((2 * n + h2) % 2)
            for r in range(8):
                a(f'v_mul_f32 v{base + r}, v{base + r}, v{inv}')
            for k in range(4):
                a(f'v_cvt_pk_bf16_f32 v{c + k}, v{base + 2 * k}, v{base + 2 * k + 1}')
            a(f'v_permlane32_swap_b32 v{c}, v{c + 2}')
            a(f'v_permlane32_swap_b32 v{c + 1}, v{c + 3}')
            a(f'buffer_store_dwordx4 {vr(c, 4)}, v{QOFF}, s[20:23], s{srow} offen offset:{db * 64 + h2 * 32}')

def reset_state():
    for r in range(64):
        a(f'v_mov_b32 v{O + r}, 0')
    for r in range(16):
        a(f'v_mov_b32 v{NEGM + r}, 0')
    a(f'v_mov_b32 v{L}, 0')
    a(f's_mov_b32 s{sTHR}, -1.0')
    a(f's_mov_b32 s{sLO}, 0xff800000')

def prescale_q():
    a(f's_mov_b32 s53, {f32bits(SCALE):#x}')
    for r in range(32):
        t0, t1 = TMP + (2 * r) % 8, TMP + (2 * r + 1) % 8
        a(f'v_lshlrev_b32 v{t0}, 16, v{Q + r}')
        a(f'v_and_b32 v{t1}, 0xffff0000, v{Q + r}')
        a(f'v_mul_f32 v{t0}, s53, v{t0}')
        a(f'v_mul_f32 v{t1}, s53, v{t1}')
        a(f'v_cvt_pk_bf16_f32 v{Q + r}, v{t0}, v{t1}')

def call(label, ret):
    a(f's_call_b64 s[{ret}:{ret + 1}], {label}')

a.label(KNAME)
a('s_cmp_ge_u32 s2, 256')
a('s_cbranch_scc1 L_END')
stamp()
a('s_load_dwordx4 s[4:7], s[0:1], 0')
a('s_load_dwordx4 s[48:51], s[0:1], 16')
l32, h, l16, g4, r4, c4 = TMP, TMP + 1, TMP + 2, TMP + 3, TMP + 4, TMP + 5
x, y, z = TMP + 6, TMP + 7, TMP + 8
a(f'v_lshrrev_b32 v{x}, 6, v0')
a(f'v_and_b32 v{LANE}, 63, v0')
a(f'v_readfirstlane_b32 s{sW}, v{x}')
a('s_and_b32 s52, s2, 7')
a('s_lshr_b32 s53, s2, 3')
a('s_and_b32 s54, s53, 3')
a('s_lshl_b32 s52, s52, 2')
a('s_add_u32 s52, s52, s54')
a(f's_lshr_b32 s{sI}, s53, 2')
a('s_lshl_b32 s52, s52, 19')
a(f'v_and_b32 v{l32}, 31, v{LANE}')
a(f'v_lshrrev_b32 v{h}, 5, v{LANE}')
a(f'v_and_b32 v{l16}, 15, v{LANE}')
a(f'v_lshrrev_b32 v{g4}, 4, v{LANE}')
a(f's_and_b32 s{sWQ}, s{sW}, 3')
a(f's_lshl_b32 s{sKEYB}, s{sI}, 7')
a(f's_sub_u32 s{sKEYA}, 1920, s{sKEYB}')
a(f's_lshl_b32 s{sW2K}, s{sW}, 11')
a(f's_sub_u32 s53, 3, s{sWQ}')
a('s_lshl_b32 s53, s53, 5')
a(f's_add_u32 s53, s53, s{sKEYA}')
a(f's_lshl_b32 s{sROW}, s53, 8')
a(f'v_lshlrev_b32 v{x}, 8, v{l32}')
a(f'v_lshl_add_u32 v{QOFF}, v{h}, 4, v{x}')
a(f's_and_b32 s53, s{sW}, 1')
a('s_lshl_b32 s53, s53, 3')
a(f'v_add_u32 v{y}, s53, v{g4}')
a(f'v_xor_b32 v{y}, v{y}, v{l16}')
a(f'v_lshlrev_b32 v{x}, 8, v{g4}')
a(f'v_lshl_add_u32 v{VOK0}, v{y}, 4, v{x}')
a(f'v_xor_b32 v{y}, 4, v{y}')
a(f'v_lshl_add_u32 v{VOK1}, v{y}, 4, v{x}')
a(f's_add_u32 s{sKOFF}, s{sW2K}, {896 * 256}')
a(f's_mov_b32 m0, s{sW2K}')
a('s_mov_b32 s10, 0x80000')
a('s_mov_b32 s11, 0x00020000')
a('s_mov_b32 s14, 0x80000')
a('s_mov_b32 s15, 0x00020000')
a('s_waitcnt lgkmcnt(0)')
if ENV('PSTAMPS'): stamp()
a('s_add_u32 s8, s4, s52')
a('s_addc_u32 s9, s5, 0')
a('s_add_u32 s12, s6, s52')
a('s_addc_u32 s13, s7, 0')
for s_ in range(8):
    a(f'buffer_load_dwordx4 {vr(Q + 4 * s_, 4)}, v{QOFF}, s[8:11], s{sROW} offen offset:{32 * s_}')
dma_pair('K', sKOFF)
for base, lo, hi in ((16, 48, 49), (20, 50, 51)):
    a(f's_add_u32 s{base}, s{lo}, s52')
    a(f's_addc_u32 s{base + 1}, s{hi}, 0')
    a(f's_mov_b32 s{base + 2}, 0x80000')
    a(f's_mov_b32 s{base + 3}, 0x00020000')
a(f's_lshr_b32 s{sG}, s{sW}, 2')
a(f's_lshl_b32 s{s2I}, s{sI}, 1')
a(f's_sub_u32 s{sN}, 34, s{s2I}')
a(f's_lshl_b32 s53, s{sI}, 2')
a(f's_sub_u32 s{sNS}, 30, s53')
a(f's_lshl_b32 s53, s{sWQ}, 5')
a(f's_add_u32 s53, s53, s{sKEYB}')
a(f's_lshl_b32 s{sROWB}, s53, 8')
a(f's_sub_u32 s53, 4, s{sWQ}')
a(f's_add_u32 s54, s{sWQ}, 1')
a(f's_cmp_eq_u32 s{sG}, 0')
a(f's_cselect_b32 s{sNW}, s53, s54')
a(f's_mov_b32 s{sKQ}, 1')
a(f's_mov_b32 s{sVQ}, 0')
a(f's_add_u32 s{sMK}, s{sW2K}, 0x4000')
a(f's_add_u32 s{sMV}, s{sW2K}, 0x10000')
a(f'v_bfe_u32 v{r4}, v{LANE}, 2, 2')
a(f'v_and_b32 v{c4}, 3, v{LANE}')
a(f'v_lshlrev_b32 v{x}, 8, v{g4}')
a(f'v_lshlrev_b32 v{y}, 2, v{g4}')
a(f'v_xor_b32 v{y}, v{y}, v{l16}')
a(f'v_lshl_add_u32 v{VOV}, v{y}, 4, v{x}')
a(f'v_lshrrev_b32 v{x}, 1, v{LANE}')
a(f'v_lshlrev_b32 v{x}, 6, v{x}')
a(f'v_sub_u32 v{y}, 896, v{x}')
a(f'v_add_u32 v{x}, 960, v{x}')
a(f'v_and_b32 v{z}, 1, v{LANE}')
a(f'v_cmp_eq_u32 vcc, 1, v{z}')
a(f'v_cndmask_b32 v{TAB}, v{y}, v{x}, vcc')
a(f'v_subrev_u32 v{x}, s{sNS}, v{LANE}')
a(f'v_lshlrev_b32 v{y}, 6, v{x}')
a(f'v_cmp_le_i32 vcc, 0, v{x}')
a(f'v_cndmask_b32 v{TAB}, v{TAB}, v{y}, vcc')
a(f'v_subrev_u32 v{x}, s{s2I}, v{x}')
a(f'v_and_b32 v{z}, 1, v{x}')
a(f'v_mov_b32 v{y}, s{sKEYA}')
a(f'v_mov_b32 v{TMP + 9}, s{sKEYB}')
a(f'v_cmp_eq_u32 vcc, 1, v{z}')
a(f'v_cndmask_b32 v{y}, v{y}, v{TMP + 9}, vcc')
a(f'v_lshrrev_b32 v{z}, 1, v{x}')
a(f'v_and_b32 v{z}, 1, v{z}')
a(f'v_lshl_add_u32 v{y}, v{z}, 6, v{y}')
a(f'v_cmp_le_i32 vcc, 0, v{x}')
a(f'v_cndmask_b32 v{TAB}, v{TAB}, v{y}, vcc')
a(f'v_lshlrev_b32 v{TAB}, 8, v{TAB}')
a(f'v_add_u32 v{TAB}, s{sW2K}, v{TAB}')
a(f's_lshl_b32 s{sPOSK}, s{sG}, 13')
a(f's_mov_b32 s{sPOSV}, s{sPOSK}')
a(f'v_lshlrev_b32 v{x}, 8, v{l32}')
a(f'v_add_u32 v{x}, s{sPOSK}, v{x}')
for s_ in range(8):
    a(f'v_add_u32 v{y}, {2 * s_}, v{h}')
    a(f'v_xor_b32 v{y}, v{y}, v{l16}')
    a(f'v_lshl_add_u32 v{AK + s_}, v{y}, 4, v{x}')
a(f'v_lshl_add_u32 v{x}, v{h}, 2, v{r4}')
a(f'v_lshlrev_b32 v{x}, 8, v{x}')
a(f'v_add_u32 v{x}, {LDS_V}, v{x}')
a(f'v_add_u32 v{x}, s{sPOSV}, v{x}')
a(f'v_and_b32 v{y}, 1, v{c4}')
a(f'v_lshl_add_u32 v{x}, v{y}, 3, v{x}')
a(f'v_and_b32 v{y}, 1, v{g4}')
a(f'v_lshl_add_u32 v{x}, v{y}, 5, v{x}')
a(f'v_lshrrev_b32 v{y}, 1, v{c4}')
a(f'v_lshl_add_u32 v{x}, v{y}, 4, v{x}')
for db in range(4):
    a(f'v_xor_b32 v{y}, {db}, v{r4}')
    a(f'v_lshl_add_u32 v{AV + db}, v{y}, 6, v{x}')
a(f'v_lshlrev_b32 v{y}, 2, v{h}')
a(f'v_sub_u32 v{JJ}, v{l32}, v{y}')
a(f'v_mov_b32 v{NINF}, 0xff800000')
a(f'v_lshlrev_b32 v{XADDR}, 4, v{LANE}')
reset_state()
if ENV('PSTAMPS'): stamp()
a('s_waitcnt vmcnt(0)')
if ENV('PSTAMPS'): stamp()
issue('V'); issue('K'); issue('V'); issue('K'); issue('K')
prescale_q()
stamp()
a('s_barrier')
def stage_qb():
    for n_ in range(2):
        a(f's_lshl_b32 s53, s{sKEYB}, 8')
        a(f's_add_u32 s53, s53, s{sW2K}')
        if n_:
            a('s_add_u32 s53, s53, 16384')
        a(f's_add_u32 s54, s{sW2K}, {LDS_STASH + 16384 * n_}')
        a('s_mov_b32 m0, s54')
        a('s_nop 0')
        a(f'buffer_load_dwordx4 v{VOK0}, s[8:11], s53 offen lds')
        a(f'buffer_load_dwordx4 v{VOK1}, s[8:11], s53 offen offset:1024 lds')
a(f's_sub_u32 s{sCNT}, 7, s{sI}')
load_offs()
if ENV('PSTAMPS'): stamp()
head(0)
if ENV('PSTAMPS'): stamp()
a(f's_cmp_lg_u32 s{sG}, 0')
a('s_cbranch_scc1 L_S_FIRST_Y')
for grp in ('X', 'Y'):
    yl = grp == 'Y'
    stage(f'L_S_FIRST_{grp}', 0, False, True, 16384, 0, hk='dma')
    stage_qb()
    a.label(f'L_S_LOOP_{grp}')
    a(f's_cmp_eq_u32 s{sCNT}, 0')
    a(f's_cbranch_scc1 L_S_LAST_{grp}')
    a(f's_sub_u32 s{sCNT}, s{sCNT}, 1')
    for p in (1, 2, 3, 0):
        stage(f'L_S_MID{p}_{grp}', p & 1, True, True, ((p + 1) & 3) * 16384, p * 16384, hk='dma', ylate=yl)
    a(f's_branch L_S_LOOP_{grp}')
    stage(f'L_S_LAST_{grp}', 1, True, False, 0, 16384, hk='sync', ylate=yl)
    if grp == 'X':
        a('s_branch L_S_TAIL')
a.label('L_S_TAIL')
tail()
stamp()
a('s_waitcnt vmcnt(0)')
a('s_barrier')
a(f's_lshl_b32 s53, s{sWQ}, 13')
a(f's_add_u32 s54, s53, {LDS_V}')
a(f'v_add_u32 v{TMP}, s54, v{XADDR}')
a(f's_add_u32 s54, s53, {LDS_STASH}')
a(f'v_add_u32 v{TMP + 1}, s54, v{XADDR}')
a(f's_lshl_b32 s54, s{sWQ}, 10')
a('s_add_u32 s54, s54, 16384')
a(f'v_add_u32 v{TMP + 2}, s54, v{XADDR}')
a(f's_cmp_eq_u32 s{sG}, 0')
a('s_cbranch_scc1 L_MRG_X')
a(f's_add_u32 s54, s53, {LDS_STASH}')
a(f's_sub_u32 s54, s54, s{sPOSK}')
for s_ in range(8):
    a(f'v_add_u32 v{S[0] + s_}, s54, v{AK + s_}')
for s_ in range(8):
    a(f'ds_read_b128 {vr(Q + 4 * s_, 4)}, v{S[0] + s_}')
a(f'v_mov_b32 v{S[1]}, v{NEGM}')
a(f'v_mov_b32 v{S[1] + 1}, v{L}')
a(f'ds_write_b64 v{TMP + 2}, v[{S[1]}:{S[1] + 1}]')
for k in range(8):
    a(f'ds_write_b128 v{TMP}, {vr(O + 4 * k, 4)} offset:{1024 * k}')
a('s_waitcnt lgkmcnt(9)')
for k in range(8):
    a(f'ds_write_b128 v{TMP + 1}, {vr(O + 32 + 4 * k, 4)} offset:{1024 * k}')
a('s_waitcnt lgkmcnt(0)')
a('s_barrier')
prescale_q()
reset_state()
a(f's_mov_b32 s{sROW}, s{sROWB}')
a('s_branch L_MRG_J')
a.label('L_MRG_X')
a('s_barrier')
a(f'ds_read_b64 v[{P}:{P + 1}], v{TMP + 2}')
for k in range(8):
    a(f'ds_read_b128 {vr(S[0] + 4 * k, 4)}, v{TMP} offset:{1024 * k}')
for k in range(8):
    a(f'ds_read_b128 {vr(F + 4 * k, 4)}, v{TMP + 1} offset:{1024 * k}')
a('s_waitcnt lgkmcnt(15)')
nm, fo, fp = T, T + 1, T + 2
a(f'v_min_f32 v{nm}, v{NEGM}, v{P}')
a(f'v_sub_f32 v{fo}, v{nm}, v{NEGM}')
a(f'v_sub_f32 v{fp}, v{nm}, v{P}')
a(f'v_exp_f32 v{fo}, v{fo}')
a(f'v_exp_f32 v{fp}, v{fp}')
for r in range(16):
    a(f'v_mov_b32 v{NEGM + r}, v{nm}')
a(f'v_mul_f32 v{L}, v{L}, v{fo}')
a(f'v_fma_f32 v{L}, v{P + 1}, v{fp}, v{L}')
for r in range(64):
    a(f'v_mul_f32 v{O + r}, v{O + r}, v{fo}')
a('s_waitcnt lgkmcnt(8)')
for r in range(32):
    a(f'v_fma_f32 v{O + r}, v{S[0] + r}, v{fp}, v{O + r}')
a('s_waitcnt lgkmcnt(0)')
for r in range(32):
    a(f'v_fma_f32 v{O + 32 + r}, v{F + r}, v{fp}, v{O + 32 + r}')
a.label('L_MRG_J')
stamp()
a('s_waitcnt vmcnt(0)')
a('s_barrier')
issue('V'); issue('K'); issue('V')
a(f's_cmp_eq_u32 s{sI}, 0')
a('s_cbranch_scc1 L_G1')
a(f's_sub_u32 s{sCNT}, s{sI}, 1')
a('s_mov_b32 s53, 0x8000')
setpos(53)
load_offs()
head(0)
stage('L_D_FIRST', 0, False, True, 8192, 0)
a(f's_cmp_lg_u32 s{sG}, 0')
a('s_cbranch_scc1 L_D_MID1_Y')
for grp in ('X', 'Y'):
    yl = grp == 'Y'
    stage(f'L_D_MID1_{grp}', 1, True, True, 16384, 8192, hk='dma', ylate=yl)
    stage(f'L_D_MID2_{grp}', 0, True, True, 24576, 16384)
    a(f's_cmp_eq_u32 s{sCNT}, 0')
    a('s_cbranch_scc1 L_D_LAST')
    a(f's_sub_u32 s{sCNT}, s{sCNT}, 1')
    stage(f'L_D_MID3_{grp}', 1, True, True, 0, 24576, hk='dma', ylate=yl, ktog=True)
    stage(f'L_D_MID0_{grp}', 0, True, True, 8192, 0, vtog=True)
    a(f's_branch L_D_MID1_{grp}')
stage('L_D_LAST', 1, True, False, 0, 24576)
tail()
a.label('L_G1')
stamp()
a('s_waitcnt vmcnt(0)')
a('s_barrier')
issue('V'); issue('K'); issue('V')
a(f's_add_u32 s53, s{s2I}, s{sG}')
a('s_add_u32 s53, s53, 2')
a('s_and_b32 s53, s53, 3')
a('s_lshl_b32 s53, s53, 14')
setpos(53)
a(f's_min_u32 s{sCNT}, s{sNW}, 2')
a(f's_cmp_le_u32 s{sNW}, 2')
a(f's_cselect_b32 s{sMASK}, 1, 0')
call('L_G', sRET1)
stamp()
a('s_waitcnt vmcnt(0)')
a('s_barrier')
a(f's_cmp_le_u32 s{sNW}, 2')
a('s_cbranch_scc1 L_FIN')
a(f's_xor_b32 s53, s{sPOSK}, 0x8000')
setpos(53)
a(f's_sub_u32 s{sCNT}, s{sNW}, 2')
a(f's_mov_b32 s{sMASK}, 1')
call('L_G', sRET1)
a.label('L_FIN')
stamp()
t0, t1 = TMP, TMP + 1
a(f'v_mov_b32 v{t0}, v{L}')
a(f'v_mov_b32 v{t1}, v{L}')
a(f'v_permlane32_swap_b32 v{t0}, v{t1}')
a(f'v_add_f32 v{t0}, v{t0}, v{t1}')
a(f'v_rcp_f32 v{t0}, v{t0}')
store_block([0, 1, 2, 3], t0, sROW)
stamp_store()
a.label('L_END')
a('s_endpgm')
a.label('L_G')
head(0)
a(f's_cmp_eq_u32 s{sCNT}, 1')
a('s_cbranch_scc1 L_G_ONLY')
stage('L_G_FIRST', 0, False, True, 8192, 0)
stage('L_G_LAST', 1, True, False, 0, 8192, maskable=True)
a('s_branch L_G_TAIL')
stage('L_G_ONLY', 0, False, False, 0, 0, maskable=True)
a.label('L_G_TAIL')
tail()
a(f's_setpc_b64 s[{sRET1}:{sRET1 + 1}]')
for site, back, b, fx in rare_sites:
    a.label(site)
    call(f'L_rarebody_{b}_{int(fx)}', sRET2)
    a(f's_branch {back}')
for b in range(2):
    for fx in (False, True):
        rare_body(b, fx)

hdr = f"""; causal flash-attention forward, B=1 H=32 S=2048 D=128 bf16 (generated by gen/gen3.py)
; @launch grid=(256,1,1) block=(512,1,1) lds={LDS_BYTES}
.amdgcn_target "amdgcn-amd-amdhsa--gfx950"
.text
.globl {KNAME}
.p2align 8
.type {KNAME},@function
"""
ftr = f"""
.section .rodata,"a"
.p2align 6
.amdhsa_kernel {KNAME}
  .amdhsa_next_free_vgpr {NV}
  .amdhsa_next_free_sgpr 100
  .amdhsa_accum_offset {NV}
  .amdhsa_group_segment_fixed_size 0
  .amdhsa_kernarg_size 48
  .amdhsa_user_sgpr_count 2
  .amdhsa_user_sgpr_kernarg_segment_ptr 1
  .amdhsa_system_sgpr_workgroup_id_x 1
.end_amdhsa_kernel
"""
out = sys.argv[1] if len(sys.argv) > 1 else 'standalone__softmax_full_causal__prompt.s'
open(out, 'w').write(hdr + a.text() + ftr)
print('wrote', out, 'lines', len(a.lines), 'auto-nops', a.nops_inserted)
```

```python
import sys, os, struct
sys.path.insert(0, os.path.dirname(os.path.abspath(__file__)))
from asmlib import Asm, parse

KNAME = 'standalone__softmax_full_causal__prompt_kernel'
ENV = os.environ.get

O = 0
S = [64, 80]
NEGM = 96
Q = 112
F = 144
P = 176
T = 184
AK = 192
AV = 200
VOK0, VOK1, VOV = 204, 205, 206
L, SU, JJ, NINF = 207, 208, 209, 210
TMP = 211
LANE = 223
QOFF = 224
TAB = 225
XADDR = 226
NV = 228

sW, sG, sWQ = 24, 25, 26
sI, s2I, sKEYA, sKEYB, sN = 27, 28, 29, 30, 31
sKQ, sVQ, sFULL = 32, 33, 34
sPOSK, sPOSV, sNS, sCNT = 35, 36, 37, 38
sHKS, sHKM = 39, 40
sMASK, sTHR, sLO = 41, 42, 43
sRET2 = 44
sRET1 = 46
sT0 = 48
sW2K = 56
sROW = 57
sNW = 58
sKLIM, sVLIM = 59, 60
sROWB = 61
sMK, sMV = 62, 63
sC = 64
sKOFF, sVOFF = 72, 73
sSC = 74

LDS_V = 65536
LDS_STASH = 131072
LDS_BYTES = 163840
THR = 0x43800000
SCALE = 0.08838834764831845 * 1.4426950408889634

def f32bits(x):
    return struct.unpack('<I', struct.pack('<f', x))[0]

a = Asm()
_orig_call = Asm.__call__
in_stage = [False]
def _filt(self, text):
    if in_stage[0]:
        if ENV('NOWAIT') and text.startswith('s_waitcnt lgkm'):
            return
        if ENV('NOLDS') and text.startswith('ds_read'):
            return
        if ENV('NOEXP') and text.startswith('v_exp'):
            return
        if ENV('NOADD') and text.startswith('v_add_f32'):
            return
        if ENV('NOCVT') and text.startswith('v_cvt'):
            return
        if ENV('NOPV') and text.startswith('v_mfma') and text.split()[1].startswith('v[') and int(text.split()[1][2:].split(':')[0]) < 64:
            return
    _orig_call(self, text)
Asm.__call__ = _filt
uid = [0]
def newlab(p):
    uid[0] += 1
    return 'L_%s_%d' % (p, uid[0])

def vr(base, n):
    return 'v[%d:%d]' % (base, base + n - 1)

def assume(text):
    a.hist.append(parse(text))

STAMPS = ENV('STAMPS')
stamp_n = [0]
def stamp():
    if not STAMPS:
        return
    k = stamp_n[0]
    stamp_n[0] += 1
    a('s_waitcnt lgkmcnt(0)')
    a('s_memtime s[76:77]')
    a('s_waitcnt lgkmcnt(0)')
    a(f's_mov_b32 s{80 + k}, s76')
    if k == 0:
        a('s_memrealtime s[76:77]')
        a('s_waitcnt lgkmcnt(0)')
        a('s_mov_b32 s94, s76')
def stamp_store():
    if not STAMPS:
        return
    stamp()
    a('s_memrealtime s[76:77]')
    a('s_waitcnt lgkmcnt(0)')
    a('s_mov_b32 s95, s76')
    a('s_load_dwordx2 s[76:77], s[0:1], 40')
    a('s_waitcnt lgkmcnt(0)')
    a('s_mov_b32 s78, 0x10000000')
    a('s_mov_b32 s79, 0x00020000')
    a(f's_lshl_b32 s53, s2, 3')
    a(f's_add_u32 s53, s53, s{sW}')
    a('s_lshl_b32 s53, s53, 6')
    a(f'v_mov_b32 v{TMP}, 0')
    for k in range(stamp_n[0]):
        a(f'v_mov_b32 v{TMP + 1}, s{80 + k}')
        a(f'buffer_store_dword v{TMP + 1}, v{TMP}, s[76:79], s53 offen offset:{4 * k}')
        a('s_nop 2')
    for k in (14, 15):
        a(f'v_mov_b32 v{TMP + 1}, s{80 + k}')
        a(f'buffer_store_dword v{TMP + 1}, v{TMP}, s[76:79], s53 offen offset:{4 * k}')
        a('s_nop 2')

def dma_pair(which, soff):
    if which == 'K':
        a(f'buffer_load_dwordx4 v{VOK0}, s[12:15], s{soff} offen lds')
        a(f'buffer_load_dwordx4 v{VOK1}, s[12:15], s{soff} offen offset:1024 lds')
    else:
        a(f'buffer_load_dwordx4 v{VOV}, s[16:19], s{soff} offen lds')
        a(f'buffer_load_dwordx4 v{VOV}, s[16:19], s{soff} offen offset:1024 lds')

def issue(which):
    ptr, m, off = (sKQ, sMK, sKOFF) if which == 'K' else (sVQ, sMV, sVOFF)
    skip = newlab('skipdma')
    a(f'v_readlane_b32 s{off}, v{TAB}, s{ptr}')
    a(f's_cmp_ge_u32 s{ptr}, s{sN}')
    a(f's_cbranch_scc1 {skip}')
    a(f's_mov_b32 m0, s{m}')
    a(f's_add_u32 s{ptr}, s{ptr}, 1')
    a(f's_add_u32 s{m}, s{m}, 0x4000')
    if which == 'K':
        a(f's_and_b32 s{m}, s{m}, 0xffff')
    else:
        a(f's_and_b32 s{m}, s{m}, 0xffff')
        a(f's_or_b32 s{m}, s{m}, 0x10000')
    dma_pair(which, off)
    a.label(skip)

def hk_parts(dma, sphase=False):
    sync = ['s_waitcnt vmcnt(8) lgkmcnt(0)' if sphase else 's_waitcnt vmcnt(4)']
    if not ENV('NOBAR'):
        sync.append('s_barrier')
    post = []
    if dma:
        d = lambda t: [] if ENV('NODMA') else [t]
        post = [
            [f's_mov_b32 m0, s{sMK}', f's_add_u32 s{sMK}, s{sMK}, 0x4000'] + d(f'buffer_load_dwordx4 v{VOK0}, s[12:15], s{sKOFF} offen lds'),
            [f's_and_b32 s{sMK}, s{sMK}, 0xffff'] + d(f'buffer_load_dwordx4 v{VOK1}, s[12:15], s{sKOFF} offen offset:1024 lds'),
            [f's_mov_b32 m0, s{sMV}', f's_add_u32 s{sMV}, s{sMV}, 0x4000'] + d(f'buffer_load_dwordx4 v{VOV}, s[16:19], s{sVOFF} offen lds'),
            [f's_and_b32 s{sMV}, s{sMV}, 0xffff'] + d(f'buffer_load_dwordx4 v{VOV}, s[16:19], s{sVOFF} offen offset:1024 lds'),
            [f's_or_b32 s{sMV}, s{sMV}, 0x10000', f's_add_u32 s{sKQ}, s{sKQ}, 1'],
            [f's_add_u32 s{sVQ}, s{sVQ}, 1', f'v_readlane_b32 s{sKOFF}, v{TAB}, s{sKQ}'],
            [f'v_readlane_b32 s{sVOFF}, v{TAB}, s{sVQ}'],
        ]
    return sync, post

def load_offs():
    a(f'v_readlane_b32 s{sKOFF}, v{TAB}, s{sKQ}')
    a(f'v_readlane_b32 s{sVOFF}, v{TAB}, s{sVQ}')

def kread(j, off):
    a(f'ds_read_b128 {vr(F + 4 * j, 4)}, v{AK + j} offset:{off}')

def vread(j, off):
    t, db = j // 4, j % 4
    a(f'ds_read_b64_tr_b16 {vr(F + 4 * j, 2)}, v{AV + db} offset:{off + (16 * t) * 256}')
    a(f'ds_read_b64_tr_b16 {vr(F + 4 * j + 2, 2)}, v{AV + db} offset:{off + (16 * t + 8) * 256}')

def pv_mfma(j):
    t, db = j // 4, j % 4
    a(f'v_mfma_f32_32x32x16_bf16 {vr(O + 16 * db, 16)}, {vr(F + 4 * j, 4)}, {vr(P + 4 * t, 4)}, {vr(O + 16 * db, 16)}')

def qk_mfma(j, sb):
    c = NEGM if j == 0 else S[sb]
    a(f'v_mfma_f32_32x32x16_bf16 {vr(S[sb], 16)}, {vr(F + 4 * j, 4)}, {vr(Q + 4 * j, 4)}, {vr(c, 16)}')

def setpos(snew):
    t1 = sT0 + 7
    for pos, base, n in ((sPOSK, AK, 8), (sPOSV, AV, 4)):
        a(f's_sub_u32 s{t1}, s{snew}, s{pos}')
        a(f's_mov_b32 s{pos}, s{snew}')
        for k in range(n):
            a(f'v_add_u32 v{base + k}, s{t1}, v{base + k}')

def toggle_ops(which):
    pos, base, n = (sPOSK, AK, 8) if which == 'K' else (sPOSV, AV, 4)
    return [f's_xor_b32 s{pos}, s{pos}, 0x8000'] + [f'v_xor_b32 v{base + k}, 0x8000, v{base + k}' for k in range(n)]

def sm_plan(b):
    s = S[b]
    e = lambda r: f'v_exp_f32 v{T + r % 8}, v{s + r}'
    def ad(r):
        if r == 1:
            return f'v_add_f32 v{SU}, v{T}, v{T + 1}'
        return f'v_add_f32 v{SU}, v{SU}, v{T + r % 8}'
    c = lambda k: f'v_cvt_pk_bf16_f32 v{P + k}, v{T + (2 * k) % 8}, v{T + (2 * k + 1) % 8}'
    plan = {
        1: [e(0), e(1)], 2: [e(2), e(3), ad(1)], 3: [e(4), e(5), ad(2), c(0)],
        4: [e(6), e(7), ad(3), c(1)], 5: [e(8), ad(4), ad(5), c(2)], 6: [e(9), ad(6), ad(7), c(3)],
        7: [e(10), ad(8)], 8: [e(11), ad(9), c(4)], 9: [e(12), ad(10)], 10: [e(13), ad(11), c(5)],
        11: [e(14), ad(12)], 12: [e(15), ad(13), c(6)], 13: [ad(14)], 14: [ad(15), c(7)],
        15: [f'v_cmp_lt_f32 vcc, s{sTHR}, v{SU}'],
    }
    return plan

def mask_code(b):
    s = S[b]
    cr = [8 * (r // 4) + r % 4 for r in range(16)]
    pend = []
    for r in range(16):
        sp = sC + 2 * (r % 4)
        a(f'v_cmp_le_i32_e64 s[{sp}:{sp + 1}], {cr[r]}, v{JJ}')
        pend.append((r, sp))
        if len(pend) == 4:
            rr, spp = pend.pop(0)
            a(f'v_cndmask_b32_e64 v{s + rr}, v{NINF}, v{s + rr}, s[{spp}:{spp + 1}]')
    for rr, spp in pend:
        a(f'v_cndmask_b32_e64 v{s + rr}, v{NINF}, v{s + rr}, s[{spp}:{spp + 1}]')

rare_sites = []

class DSQ:
    def __init__(self, init):
        self.q = list(init)
        self.done = 0
    def push(self, tag):
        self.q.append(tag)
    def need(self, tags):
        last = max([i for i, t in enumerate(self.q) if t in tags], default=-1)
        if last < self.done:
            return
        n = len(self.q) - 1 - last
        assert n <= 15
        a(f's_waitcnt lgkmcnt({n})')
        self.done = last + 1

def stage(name, b, has_prev, has_next, koff, voff, hk=None, ylate=False,
          ktog=False, vtog=False, maskable=False):
    a.label(name)
    in_stage[0] = True
    assume(f'v_mfma_f32_32x32x16_bf16 {vr(S[b], 16)}, {vr(F, 4)}, {vr(Q, 4)}, {vr(S[b], 16)}')
    assume('s_nop 1')
    assume(f'v_cvt_pk_bf16_f32 v{P + 7}, v{T}, v{T + 1}')
    plan = sm_plan(b)
    dq = DSQ([('V', j) for j in range(8) for _ in range(2)] if has_prev else [])
    sync, post = hk_parts(hk in ('dma', 'sdma'), hk in ('sdma', 'ssync')) if (hk and not ENV('NOHK')) else ([], [])
    if hk == 'gsync':
        sync, post = ['s_waitcnt vmcnt(0)', 's_barrier'], []
    ylate = ylate and has_prev and bool(sync)
    bar_gap = int(ENV('BARGAP') or 4) if ylate else 0
    def kr(j):
        kread(j, koff); dq.push(('K', j))
    def vrd(j):
        vread(j, voff); dq.push(('V2', j)); dq.push(('V2', j))
    if ktog:
        for op in toggle_ops('K'):
            a(op)
    vt = toggle_ops('V') if vtog else []
    if not has_next:
        for op in vt:
            a(op)
        vt = []
    if not ylate:
        for op in sync:
            a(op)
            if 'lgkmcnt(0)' in op:
                dq.done = len(dq.q)
    if maskable:
        mask_code(b)
    if not has_prev:
        for j in range(8):
            if has_next:
                kr(j)
            else:
                vrd(j)
    g1reads = {g: [g] for g in range(8)}
    if ylate:
        g1reads = {4: [0, 1], 5: [2, 3], 6: [4, 5], 7: [6, 7]} if bar_gap == 4 else {2: [0, 1], 3: [2, 3], 4: [4], 5: [5], 6: [6], 7: [7]} if bar_gap == 2 else {6: [0, 1, 2, 3], 7: [4, 5, 6, 7]}
    for g in range(16):
        if ylate and g == bar_gap:
            for op in sync:
                a(op)
                if 'lgkmcnt(0)' in op:
                    dq.done = len(dq.q)
        if g < 8:
            j = g
            if has_prev:
                if j % 2 == 0:
                    dq.need({('V', j), ('V', j + 1)})
                pv_mfma(j)
                for jj in g1reads.get(g, []):
                    if has_next:
                        kr(jj)
                    else:
                        vrd(jj)
        else:
            j = g - 8
            if has_next:
                if j % 2 == 0:
                    dq.need({('K', j), ('K', j + 1)})
                qk_mfma(j, 1 - b)
                vrd(j)
        k = g - bar_gap - int(ENV('POSTSHIFT') or 0)
        if ENV('POSTSPREAD'):
            k = (g - bar_gap) // 2 if (g - bar_gap) % 2 == 0 and g >= bar_gap else -1
        if 0 <= k < len(post):
            for op in post[k]:
                a(op)
        for op in plan.get(g, []):
            a(op)
        if g == 6:
            for op in vt:
                a(op)
    site = newlab('rare')
    back = newlab('back')
    a(f's_cbranch_vccnz {site}')
    a.label(back)
    a(f'v_add_f32 v{L}, v{L}, v{SU}')
    rare_sites.append((site, back, b, has_next))
    in_stage[0] = False

def prescale_frag(j):
    for r in range(4 * j, 4 * j + 4):
        t0, t1 = TMP + (2 * r) % 8, TMP + (2 * r + 1) % 8
        a(f'v_lshlrev_b32 v{t0}, 16, v{Q + r}')
        a(f'v_and_b32 v{t1}, 0xffff0000, v{Q + r}')
        a(f'v_mul_f32 v{t0}, s{sSC}, v{t0}')
        a(f'v_mul_f32 v{t1}, s{sSC}, v{t1}')
        a(f'v_cvt_pk_bf16_f32 v{Q + r}, v{t0}, v{t1}')

def max_init():
    s = S[0]
    t0, t1, dl = TMP, TMP + 1, TMP + 2
    a(f'v_max3_f32 v{t0}, v{s}, v{s + 1}, v{s + 2}')
    for r in range(3, 15, 2):
        a(f'v_max3_f32 v{t0}, v{t0}, v{s + r}, v{s + r + 1}')
    a(f'v_max_f32 v{t0}, v{t0}, v{s + 15}')
    a(f'v_mov_b32 v{t1}, v{t0}')
    a(f'v_permlane32_swap_b32 v{t0}, v{t1}')
    a(f'v_max_f32 v{dl}, v{t0}, v{t1}')
    for r in range(16):
        a(f'v_sub_f32 v{s + r}, v{s + r}, v{dl}')
    for r in range(16):
        a(f'v_sub_f32 v{NEGM + r}, 0, v{dl}')
    a(f's_mov_b32 s{sTHR}, {THR:#x}')
    a(f's_mov_b32 s{sLO}, 0')

def head(koff, jit=False, init=None):
    if not jit:
        a.fence()
    for j in range(8):
        kread(j, koff)
    extra = ['V', 'K', 'V', 'K'] if jit else []
    for j in range(8):
        if jit:
            a(f's_waitcnt lgkmcnt({15 - j})')
            prescale_frag(j)
        if j % 2 == 0:
            a(f's_waitcnt lgkmcnt({6 - j})')
        qk_mfma(j, 0)
        if jit and j % 2 == 1:
            issue(extra[j // 2])
    if init == 'always':
        max_init()
    elif init == 'cond':
        sk = newlab('noinit')
        a(f's_cmp_eq_u32 s{sLO}, 0')
        a(f's_cbranch_scc1 {sk}')
        max_init()
        a.label(sk)

def tail():
    assume(f'v_cvt_pk_bf16_f32 v{P + 7}, v{T}, v{T + 1}')
    assume(f'v_cvt_pk_bf16_f32 v{P}, v{T}, v{T + 1}')
    for j in range(8):
        if j % 2 == 0:
            a(f's_waitcnt lgkmcnt({12 - 2 * j})')
        pv_mfma(j)
    a.fence()

def rare_body(b, fix):
    a.label(f'L_rarebody_{b}_{int(fix)}')
    a.fence()
    s = S[b]
    t0, t1, dl, f = TMP, TMP + 1, TMP + 2, TMP + 3
    a(f'v_max3_f32 v{t0}, v{s}, v{s + 1}, v{s + 2}')
    for r in range(3, 15, 2):
        a(f'v_max3_f32 v{t0}, v{t0}, v{s + r}, v{s + r + 1}')
    a(f'v_max_f32 v{t0}, v{t0}, v{s + 15}')
    a(f'v_mov_b32 v{t1}, v{t0}')
    a(f'v_permlane32_swap_b32 v{t0}, v{t1}')
    a(f'v_max3_f32 v{dl}, v{t0}, v{t1}, s{sLO}')
    a(f'v_max_f32 v{t0}, 0, v{dl}')
    a(f'v_exp_f32_e64 v{f}, -v{t0}')
    for r in range(16):
        a(f'v_sub_f32 v{NEGM + r}, v{NEGM + r}, v{dl}')
    for r in range(16):
        a(f'v_sub_f32 v{s + r}, v{s + r}, v{dl}')
    if fix:
        for r in range(16):
            a(f'v_sub_f32 v{S[1 - b] + r}, v{S[1 - b] + r}, v{dl}')
    sk = newlab('norescale')
    a(f's_cmp_lg_u32 s{sLO}, 0')
    a(f's_cbranch_scc1 {sk}')
    a(f'v_mul_f32 v{L}, v{L}, v{f}')
    for r in range(64):
        a(f'v_mul_f32 v{O + r}, v{O + r}, v{f}')
    a.label(sk)
    for half in range(2):
        for r in range(8):
            a(f'v_exp_f32 v{T + r}, v{s + 8 * half + r}')
        for r in range(8):
            if half == 0 and r == 0:
                continue
            if half == 0 and r == 1:
                a(f'v_add_f32 v{SU}, v{T}, v{T + 1}')
            else:
                a(f'v_add_f32 v{SU}, v{SU}, v{T + r}')
        for k in range(4):
            a(f'v_cvt_pk_bf16_f32 v{P + 4 * half + k}, v{T + 2 * k}, v{T + 2 * k + 1}')
    a(f's_mov_b32 s{sTHR}, {THR:#x}')
    a(f's_mov_b32 s{sLO}, 0')
    a('s_nop 1')
    a(f's_setpc_b64 s[{sRET2}:{sRET2 + 1}]')

def store_block(dbs, inv, srow):
    for n, db in enumerate(dbs):
        for h2 in range(2):
            base = O + 16 * db + 8 * h2
            c = 212 + 4 * ((2 * n + h2) % 2)
            for r in range(8):
                a(f'v_mul_f32 v{base + r}, v{base + r}, v{inv}')
            for k in range(4):
                a(f'v_cvt_pk_bf16_f32 v{c + k}, v{base + 2 * k}, v{base + 2 * k + 1}')
            a(f'v_permlane32_swap_b32 v{c}, v{c + 2}')
            a(f'v_permlane32_swap_b32 v{c + 1}, v{c + 3}')
            a(f'buffer_store_dwordx4 {vr(c, 4)}, v{QOFF}, s[20:23], s{srow} offen offset:{db * 64 + h2 * 32}')

def reset_state():
    for r in range(64):
        a(f'v_mov_b32 v{O + r}, 0')
    for r in range(16):
        a(f'v_mov_b32 v{NEGM + r}, 0')
    a(f'v_mov_b32 v{L}, 0')
    a(f's_mov_b32 s{sTHR}, -1.0')
    a(f's_mov_b32 s{sLO}, 0xff800000')

def prescale_q():
    a(f's_mov_b32 s53, {f32bits(SCALE):#x}')
    for r in range(32):
        t0, t1 = TMP + (2 * r) % 8, TMP + (2 * r + 1) % 8
        a(f'v_lshlrev_b32 v{t0}, 16, v{Q + r}')
        a(f'v_and_b32 v{t1}, 0xffff0000, v{Q + r}')
        a(f'v_mul_f32 v{t0}, s53, v{t0}')
        a(f'v_mul_f32 v{t1}, s53, v{t1}')
        a(f'v_cvt_pk_bf16_f32 v{Q + r}, v{t0}, v{t1}')

def call(label, ret):
    a(f's_call_b64 s[{ret}:{ret + 1}], {label}')

a.label(KNAME)
a('s_cmp_ge_u32 s2, 256')
a('s_cbranch_scc1 L_END')
stamp()
a('s_load_dwordx4 s[4:7], s[0:1], 0')
a('s_load_dwordx4 s[48:51], s[0:1], 16')
l32, h, l16, g4, r4, c4 = TMP, TMP + 1, TMP + 2, TMP + 3, TMP + 4, TMP + 5
x, y, z = TMP + 6, TMP + 7, TMP + 8
a(f'v_lshrrev_b32 v{x}, 6, v0')
a(f'v_and_b32 v{LANE}, 63, v0')
a(f'v_readfirstlane_b32 s{sW}, v{x}')
if ENV('CPF'):
    a('s_getpc_b64 s[90:91]')
    a(f'v_lshlrev_b32 v{y}, 7, v0')
    a(f's_cmp_ge_u32 s{sW}, 3')
    a('s_cbranch_scc1 L_NOCPF')
    a(f'global_load_dword v{XADDR}, v{y}, s[90:91]')
    a.label('L_NOCPF')
a('s_and_b32 s52, s2, 7')
a('s_lshr_b32 s53, s2, 3')
a('s_and_b32 s54, s53, 3')
a('s_lshl_b32 s52, s52, 2')
a('s_add_u32 s52, s52, s54')
a(f's_lshr_b32 s{sI}, s53, 2')
a('s_lshl_b32 s52, s52, 19')
a(f'v_and_b32 v{l32}, 31, v{LANE}')
a(f'v_lshrrev_b32 v{h}, 5, v{LANE}')
a(f'v_and_b32 v{l16}, 15, v{LANE}')
a(f'v_lshrrev_b32 v{g4}, 4, v{LANE}')
a(f's_and_b32 s{sWQ}, s{sW}, 3')
a(f's_lshl_b32 s{sKEYB}, s{sI}, 7')
a(f's_sub_u32 s{sKEYA}, 1920, s{sKEYB}')
a(f's_lshl_b32 s{sW2K}, s{sW}, 11')
a(f's_sub_u32 s53, 3, s{sWQ}')
a('s_lshl_b32 s53, s53, 5')
a(f's_add_u32 s53, s53, s{sKEYA}')
a(f's_lshl_b32 s{sROW}, s53, 8')
a(f'v_lshlrev_b32 v{x}, 8, v{l32}')
a(f'v_lshl_add_u32 v{QOFF}, v{h}, 4, v{x}')
a(f's_and_b32 s53, s{sW}, 1')
a('s_lshl_b32 s53, s53, 3')
a(f'v_add_u32 v{y}, s53, v{g4}')
a(f'v_xor_b32 v{y}, v{y}, v{l16}')
a(f'v_lshlrev_b32 v{x}, 8, v{g4}')
a(f'v_lshl_add_u32 v{VOK0}, v{y}, 4, v{x}')
a(f'v_xor_b32 v{y}, 4, v{y}')
a(f'v_lshl_add_u32 v{VOK1}, v{y}, 4, v{x}')
a(f's_add_u32 s{sKOFF}, s{sW2K}, {896 * 256}')
if ENV('ASC'):
    a(f's_lshl_b32 s{sKOFF}, s{sKEYB}, 8')
    a(f's_add_u32 s{sKOFF}, s{sKOFF}, s{sW2K}')
if ENV('DESC'):
    a(f's_sub_u32 s{sKOFF}, s{sKEYA}, 64')
    a(f's_lshl_b32 s{sKOFF}, s{sKOFF}, 8')
    a(f's_add_u32 s{sKOFF}, s{sKOFF}, s{sW2K}')
a(f's_mov_b32 m0, s{sW2K}')
a('s_mov_b32 s10, 0x80000')
a('s_mov_b32 s11, 0x00020000')
a('s_mov_b32 s14, 0x80000')
a('s_mov_b32 s15, 0x00020000')
a('s_mov_b32 s18, 0x80000')
a('s_mov_b32 s19, 0x00020000')
a(f'v_lshlrev_b32 v{y}, 2, v{g4}')
a(f'v_xor_b32 v{y}, v{y}, v{l16}')
a(f'v_lshl_add_u32 v{VOV}, v{y}, 4, v{x}')
a('s_waitcnt lgkmcnt(0)')
if ENV('PSTAMPS'): stamp()
a('s_add_u32 s8, s4, s52')
a('s_addc_u32 s9, s5, 0')
a('s_add_u32 s12, s6, s52')
a('s_addc_u32 s13, s7, 0')
a('s_add_u32 s16, s48, s52')
a('s_addc_u32 s17, s49, 0')
dma_pair('K', sKOFF)
a(f's_lshl_b32 s53, s{sKEYA}, 8')
a(f's_add_u32 s53, s53, s{sW2K}')
a(f's_add_u32 s54, s{sW2K}, {LDS_STASH}')
a('s_mov_b32 m0, s54')
a('s_add_u32 s55, s53, 16384')
a(f'buffer_load_dwordx4 v{VOK0}, s[8:11], s53 offen lds')
a(f'buffer_load_dwordx4 v{VOK1}, s[8:11], s53 offen offset:1024 lds')
a('s_add_u32 s54, s54, 16384')
a('s_mov_b32 m0, s54')
a('s_nop 0')
a(f'buffer_load_dwordx4 v{VOK0}, s[8:11], s55 offen lds')
a(f'buffer_load_dwordx4 v{VOK1}, s[8:11], s55 offen offset:1024 lds')
a(f's_add_u32 s54, s{sW2K}, 0x10000')
a('s_mov_b32 m0, s54')
a(f's_add_u32 s55, s{sKOFF}, 16384')
dma_pair('V', sKOFF)
a(f's_add_u32 s54, s{sW2K}, 0x4000')
a('s_mov_b32 m0, s54')
a('s_nop 0')
dma_pair('K', 55)
a('s_add_u32 s20, s50, s52')
a('s_addc_u32 s21, s51, 0')
a('s_mov_b32 s22, 0x80000')
a('s_mov_b32 s23, 0x00020000')
a(f's_lshr_b32 s{sG}, s{sW}, 2')
a(f's_lshl_b32 s{s2I}, s{sI}, 1')
a(f's_sub_u32 s{sN}, 34, s{s2I}')
a(f's_lshl_b32 s53, s{sI}, 2')
a(f's_sub_u32 s{sNS}, 30, s53')
a(f's_lshl_b32 s53, s{sWQ}, 5')
a(f's_add_u32 s53, s53, s{sKEYB}')
a(f's_lshl_b32 s{sROWB}, s53, 8')
a(f's_sub_u32 s53, 4, s{sWQ}')
a(f's_add_u32 s54, s{sWQ}, 1')
a(f's_cmp_eq_u32 s{sG}, 0')
a(f's_cselect_b32 s{sNW}, s53, s54')
a(f's_mov_b32 s{sKQ}, 2')
a(f's_mov_b32 s{sVQ}, 1')
a(f's_add_u32 s{sMK}, s{sW2K}, 0x8000')
a(f's_add_u32 s{sMV}, s{sW2K}, 0x14000')
a(f'v_bfe_u32 v{r4}, v{LANE}, 2, 2')
a(f'v_and_b32 v{c4}, 3, v{LANE}')
a(f'v_lshrrev_b32 v{x}, 1, v{LANE}')
a(f'v_lshlrev_b32 v{x}, 6, v{x}')
a(f'v_sub_u32 v{y}, 896, v{x}')
a(f'v_add_u32 v{x}, 960, v{x}')
a(f'v_and_b32 v{z}, 1, v{LANE}')
a(f'v_cmp_eq_u32 vcc, 1, v{z}')
a(f'v_cndmask_b32 v{TAB}, v{y}, v{x}, vcc')
if ENV('ASC'):
    a(f'v_lshlrev_b32 v{TAB}, 6, v{LANE}')
    a(f'v_add_u32 v{TAB}, s{sKEYB}, v{TAB}')
if ENV('DESC'):
    a(f'v_lshlrev_b32 v{TAB}, 6, v{LANE}')
    a(f'v_sub_u32 v{TAB}, s{sKEYA}, v{TAB}')
    a(f'v_subrev_u32 v{TAB}, 64, v{TAB}')
a(f'v_subrev_u32 v{x}, s{sNS}, v{LANE}')
a(f'v_lshlrev_b32 v{y}, 6, v{x}')
a(f'v_cmp_le_i32 vcc, 0, v{x}')
a(f'v_cndmask_b32 v{TAB}, v{TAB}, v{y}, vcc')
a(f'v_subrev_u32 v{x}, s{s2I}, v{x}')
a(f'v_and_b32 v{z}, 1, v{x}')
a(f'v_mov_b32 v{y}, s{sKEYA}')
a(f'v_mov_b32 v{TMP + 9}, s{sKEYB}')
a(f'v_cmp_eq_u32 vcc, 1, v{z}')
a(f'v_cndmask_b32 v{y}, v{y}, v{TMP + 9}, vcc')
a(f'v_lshrrev_b32 v{z}, 1, v{x}')
a(f'v_and_b32 v{z}, 1, v{z}')
a(f'v_lshl_add_u32 v{y}, v{z}, 6, v{y}')
a(f'v_cmp_le_i32 vcc, 0, v{x}')
a(f'v_cndmask_b32 v{TAB}, v{TAB}, v{y}, vcc')
a(f'v_lshlrev_b32 v{TAB}, 8, v{TAB}')
a(f'v_add_u32 v{TAB}, s{sW2K}, v{TAB}')
a(f's_lshl_b32 s{sPOSK}, s{sG}, 13')
a(f's_mov_b32 s{sPOSV}, s{sPOSK}')
a(f'v_lshlrev_b32 v{x}, 8, v{l32}')
a(f'v_add_u32 v{x}, s{sPOSK}, v{x}')
for s_ in range(8):
    a(f'v_add_u32 v{y}, {2 * s_}, v{h}')
    a(f'v_xor_b32 v{y}, v{y}, v{l16}')
    a(f'v_lshl_add_u32 v{AK + s_}, v{y}, 4, v{x}')
a(f'v_lshl_add_u32 v{x}, v{h}, 2, v{r4}')
a(f'v_lshlrev_b32 v{x}, 8, v{x}')
a(f'v_add_u32 v{x}, {LDS_V}, v{x}')
a(f'v_add_u32 v{x}, s{sPOSV}, v{x}')
a(f'v_and_b32 v{y}, 1, v{c4}')
a(f'v_lshl_add_u32 v{x}, v{y}, 3, v{x}')
a(f'v_and_b32 v{y}, 1, v{g4}')
a(f'v_lshl_add_u32 v{x}, v{y}, 5, v{x}')
a(f'v_lshrrev_b32 v{y}, 1, v{c4}')
a(f'v_lshl_add_u32 v{x}, v{y}, 4, v{x}')
for db in range(4):
    a(f'v_xor_b32 v{y}, {db}, v{r4}')
    a(f'v_lshl_add_u32 v{AV + db}, v{y}, 6, v{x}')
a(f'v_lshlrev_b32 v{y}, 2, v{h}')
a(f'v_sub_u32 v{JJ}, v{l32}, v{y}')
a(f'v_mov_b32 v{NINF}, 0xff800000')
a(f'v_lshlrev_b32 v{XADDR}, 4, v{LANE}')
reset_state()
if ENV('PSTAMPS'): stamp()
a('s_waitcnt vmcnt(4)')
if ENV('PSTAMPS'): stamp()
stamp()
a('s_barrier')
a(f's_sub_u32 s53, 3, s{sWQ}')
a('s_lshl_b32 s53, s53, 13')
a(f's_add_u32 s54, s53, {LDS_STASH}')
a(f's_sub_u32 s54, s54, s{sPOSK}')
for s_ in range(8):
    a(f'v_add_u32 v{S[0] + s_}, s54, v{AK + s_}')
for s_ in range(8):
    a(f'ds_read_b128 {vr(Q + 4 * s_, 4)}, v{S[0] + s_}')
a(f's_mov_b32 s{sSC}, {f32bits(SCALE):#x}')
def stage_qb():
    for n_ in range(2):
        a(f's_lshl_b32 s53, s{sKEYB}, 8')
        a(f's_add_u32 s53, s53, s{sW2K}')
        if n_:
            a('s_add_u32 s53, s53, 16384')
        a(f's_add_u32 s54, s{sW2K}, {LDS_STASH + 16384 * n_}')
        a('s_mov_b32 m0, s54')
        a('s_nop 0')
        a(f'buffer_load_dwordx4 v{VOK0}, s[8:11], s53 offen lds')
        a(f'buffer_load_dwordx4 v{VOK1}, s[8:11], s53 offen offset:1024 lds')
a(f's_sub_u32 s{sCNT}, 7, s{sI}')
a(f's_min_u32 s{sMASK}, s{sCNT}, 1')
head(0, jit=True, init='always')
load_offs()
if ENV('PSTAMPS'): stamp()
if ENV('PRIOX'):
    a('s_setprio 1')
a(f's_cmp_lg_u32 s{sG}, 0')
a('s_cbranch_scc1 L_S_PRE_Y')
for grp in ('X', 'Y'):
    yl = grp == 'Y'
    if yl:
        a.label('L_S_PRE_Y')
        if ENV('PRIOY'):
            a('s_setprio 1')
        if ENV('PRIOX'):
            a('s_setprio 0')
    stage(f'L_S_FIRST_{grp}', 0, False, True, 16384, 0, hk='sdma')
    a.label(f'L_S_LOOP_{grp}')
    a(f's_cmp_gt_u32 s{sCNT}, 1')
    a(f's_cbranch_scc1 L_S_GO_{grp}')
    a(f's_cmp_eq_u32 s{sCNT}, s{sMASK}')
    a(f's_cbranch_scc0 L_S_NOQB_{grp}')
    stage_qb()
    a.label(f'L_S_NOQB_{grp}')
    a(f's_cmp_eq_u32 s{sCNT}, 0')
    a(f's_cbranch_scc1 L_S_LAST_{grp}')
    a.label(f'L_S_GO_{grp}')
    a(f's_sub_u32 s{sCNT}, s{sCNT}, 1')
    for p in (1, 2, 3, 0):
        stage(f'L_S_MID{p}_{grp}', p & 1, True, True, ((p + 1) & 3) * 16384, p * 16384, hk='sdma', ylate=yl)
    a(f's_branch L_S_LOOP_{grp}')
    stage(f'L_S_LAST_{grp}', 1, True, False, 0, 16384, hk='ssync', ylate=yl)
    if grp == 'X':
        a('s_branch L_S_TAIL')
a.label('L_S_TAIL')
tail()
stamp()
a('s_waitcnt vmcnt(0)')
a('s_barrier')
a(f's_lshl_b32 s53, s{sWQ}, 13')
a(f's_add_u32 s54, s53, {LDS_V}')
a(f'v_add_u32 v{TMP}, s54, v{XADDR}')
a(f's_add_u32 s54, s53, {LDS_STASH}')
a(f'v_add_u32 v{TMP + 1}, s54, v{XADDR}')
a(f's_lshl_b32 s54, s{sWQ}, 10')
a('s_add_u32 s54, s54, 16384')
a(f'v_add_u32 v{TMP + 2}, s54, v{XADDR}')
a(f's_cmp_eq_u32 s{sG}, 0')
a('s_cbranch_scc1 L_MRG_X')
a(f's_add_u32 s54, s53, {LDS_STASH}')
a(f's_sub_u32 s54, s54, s{sPOSK}')
for s_ in range(8):
    a(f'v_add_u32 v{S[0] + s_}, s54, v{AK + s_}')
for s_ in range(8):
    a(f'ds_read_b128 {vr(Q + 4 * s_, 4)}, v{S[0] + s_}')
a(f'v_mov_b32 v{S[1]}, v{NEGM}')
a(f'v_mov_b32 v{S[1] + 1}, v{L}')
a(f'ds_write_b64 v{TMP + 2}, v[{S[1]}:{S[1] + 1}]')
for k in range(8):
    a(f'ds_write_b128 v{TMP}, {vr(O + 4 * k, 4)} offset:{1024 * k}')
a('s_waitcnt lgkmcnt(9)')
for k in range(8):
    a(f'ds_write_b128 v{TMP + 1}, {vr(O + 32 + 4 * k, 4)} offset:{1024 * k}')
a('s_waitcnt lgkmcnt(0)')
a('s_barrier')
prescale_q()
reset_state()
a(f's_mov_b32 s{sROW}, s{sROWB}')
a('s_branch L_MRG_J')
a.label('L_MRG_X')
a('s_barrier')
a(f'ds_read_b64 v[{P}:{P + 1}], v{TMP + 2}')
for k in range(8):
    a(f'ds_read_b128 {vr(S[0] + 4 * k, 4)}, v{TMP} offset:{1024 * k}')
for k in range(8):
    a(f'ds_read_b128 {vr(F + 4 * k, 4)}, v{TMP + 1} offset:{1024 * k}')
a('s_waitcnt lgkmcnt(15)')
nm, fo, fp = T, T + 1, T + 2
a(f'v_min_f32 v{nm}, v{NEGM}, v{P}')
a(f'v_sub_f32 v{fo}, v{nm}, v{NEGM}')
a(f'v_sub_f32 v{fp}, v{nm}, v{P}')
a(f'v_exp_f32 v{fo}, v{fo}')
a(f'v_exp_f32 v{fp}, v{fp}')
for r in range(16):
    a(f'v_mov_b32 v{NEGM + r}, v{nm}')
a(f'v_mul_f32 v{L}, v{L}, v{fo}')
a(f'v_fma_f32 v{L}, v{P + 1}, v{fp}, v{L}')
for r in range(64):
    a(f'v_mul_f32 v{O + r}, v{O + r}, v{fo}')
a('s_waitcnt lgkmcnt(8)')
for r in range(32):
    a(f'v_fma_f32 v{O + r}, v{S[0] + r}, v{fp}, v{O + r}')
a('s_waitcnt lgkmcnt(0)')
for r in range(32):
    a(f'v_fma_f32 v{O + 32 + r}, v{F + r}, v{fp}, v{O + 32 + r}')
a.label('L_MRG_J')
stamp()
a('s_waitcnt vmcnt(0)')
a('s_barrier')
issue('K'); issue('V')
a(f's_cmp_eq_u32 s{sI}, 0')
a('s_cbranch_scc1 L_G1')
a(f's_sub_u32 s{sCNT}, s{sI}, 1')
a('s_mov_b32 s53, 0x8000')
setpos(53)
load_offs()
head(0, init='cond')
stage('L_D_FIRST', 0, False, True, 8192, 0)
a(f's_cmp_lg_u32 s{sG}, 0')
a('s_cbranch_scc1 L_D_MID1_Y')
for grp in ('X', 'Y'):
    yl = grp == 'Y'
    stage(f'L_D_MID1_{grp}', 1, True, True, 16384, 8192, hk='dma', ylate=yl)
    stage(f'L_D_MID2_{grp}', 0, True, True, 24576, 16384)
    a(f's_cmp_eq_u32 s{sCNT}, 0')
    a('s_cbranch_scc1 L_D_LAST')
    a(f's_sub_u32 s{sCNT}, s{sCNT}, 1')
    stage(f'L_D_MID3_{grp}', 1, True, True, 0, 24576, hk='dma', ylate=yl, ktog=True)
    stage(f'L_D_MID0_{grp}', 0, True, True, 8192, 0, vtog=True)
    a(f's_branch L_D_MID1_{grp}')
stage('L_D_LAST', 1, True, False, 0, 24576)
tail()
a.label('L_G1')
stamp()
a('s_waitcnt vmcnt(0)')
a('s_barrier')
issue('V'); issue('K'); issue('V')
a(f's_add_u32 s53, s{s2I}, s{sG}')
a('s_add_u32 s53, s53, 2')
a('s_and_b32 s53, s53, 3')
a('s_lshl_b32 s53, s53, 14')
setpos(53)
head(0)
a(f's_cmp_eq_u32 s{sNW}, 1')
a('s_cbranch_scc1 L_G_SYNC1')
stage('L_G_FIRST', 0, False, True, 8192, 0)
a(f's_cmp_eq_u32 s{sNW}, 2')
a('s_cbranch_scc1 L_G_SYNC2')
stage('L_G_MID1', 1, True, True, 0, 8192, hk='gsync', ktog=True)
a(f's_cmp_eq_u32 s{sNW}, 3')
a('s_cbranch_scc1 L_G_LAST2')
stage('L_G_MID2', 0, True, True, 8192, 0, vtog=True)
stage('L_G_LAST1', 1, True, False, 0, 8192, maskable=True)
a('s_branch L_G_TAIL')
stage('L_G_LAST2', 0, True, False, 0, 0, vtog=True, maskable=True)
a('s_branch L_G_TAIL')
a.label('L_G_SYNC2')
a('s_waitcnt vmcnt(0)')
a('s_barrier')
a('s_branch L_G_LAST1')
a.label('L_G_SYNC1')
a('s_waitcnt vmcnt(0)')
a('s_barrier')
stage('L_G_ONLY', 0, False, False, 0, 0, maskable=True)
a.label('L_G_TAIL')
tail()
a.label('L_FIN')
stamp()
t0, t1 = TMP, TMP + 1
a(f'v_mov_b32 v{t0}, v{L}')
a(f'v_mov_b32 v{t1}, v{L}')
a(f'v_permlane32_swap_b32 v{t0}, v{t1}')
a(f'v_add_f32 v{t0}, v{t0}, v{t1}')
a(f'v_rcp_f32 v{t0}, v{t0}')
store_block([0, 1, 2, 3], t0, sROW)
stamp_store()
a.label('L_END')
a('s_endpgm')
for site, back, b, fx in rare_sites:
    a.label(site)
    call(f'L_rarebody_{b}_{int(fx)}', sRET2)
    a(f's_branch {back}')
for b in range(2):
    for fx in (False, True):
        rare_body(b, fx)

hdr = f"""; causal flash-attention forward, B=1 H=32 S=2048 D=128 bf16 (generated by gen/gen5.py)
; @launch grid=(256,1,1) block=(512,1,1) lds={LDS_BYTES}
.amdgcn_target "amdgcn-amd-amdhsa--gfx950"
.text
.globl {KNAME}
.p2align 8
.type {KNAME},@function
"""
ftr = f"""
.section .rodata,"a"
.p2align 6
.amdhsa_kernel {KNAME}
  .amdhsa_next_free_vgpr {NV}
  .amdhsa_next_free_sgpr 100
  .amdhsa_accum_offset {NV}
  .amdhsa_group_segment_fixed_size 0
  .amdhsa_kernarg_size 48
  .amdhsa_user_sgpr_count 2
  .amdhsa_user_sgpr_kernarg_segment_ptr 1
  .amdhsa_system_sgpr_workgroup_id_x 1
.end_amdhsa_kernel
"""
out = sys.argv[1] if len(sys.argv) > 1 else 'standalone__softmax_full_causal__prompt.s'
open(out, 'w').write(hdr + a.text() + ftr)
print('wrote', out, 'lines', len(a.lines), 'auto-nops', a.nops_inserted)
```

```python
import sys, os, struct
sys.path.insert(0, os.path.dirname(os.path.abspath(__file__)))
from asmlib import Asm, parse

KNAME = 'standalone__softmax_full_causal__prompt_kernel'
ENV = os.environ.get

O = 0
S = [64, 80]
NEGM = 96
Q = 112
F = 144
P = 176
T = 184
AK = 192
AV = 200
VOK0, VOK1, VOV = 204, 205, 206
L, SU, JJ, NINF = 207, 208, 209, 210
TMP = 211
LANE = 223
QOFF = 224
TAB = 225
XADDR = 226
NV = 228

sW, sG, sWQ = 24, 25, 26
sI, s2I, sKEYA, sKEYB, sN = 27, 28, 29, 30, 31
sKQ, sVQ, sFULL = 32, 33, 34
sPOSK, sPOSV, sNS, sCNT = 35, 36, 37, 38
sHKS, sHKM = 39, 40
sMASK, sTHR, sLO = 41, 42, 43
sRET2 = 44
sRET1 = 46
sT0 = 48
sW2K = 56
sROW = 57
sNW = 58
sKLIM, sVLIM = 59, 60
sROWB = 61
sMK, sMV = 62, 63
sC = 64
sKOFF, sVOFF = 72, 73
sSC = 74

LDS_V = 65536
LDS_STASH = 131072
LDS_BYTES = 163840
THR = 0x43800000
SCALE = 0.08838834764831845 * 1.4426950408889634

def f32bits(x):
    return struct.unpack('<I', struct.pack('<f', x))[0]

a = Asm()
QNT = '' if ENV('NOQNT') else ' nt'
_orig_call = Asm.__call__
in_stage = [False]
def _filt(self, text):
    if in_stage[0]:
        if ENV('NOWAIT') and text.startswith('s_waitcnt lgkm'):
            return
        if ENV('NOLDS') and text.startswith('ds_read'):
            return
        if ENV('NOEXP') and text.startswith('v_exp'):
            return
        if ENV('NOADD') and text.startswith('v_add_f32'):
            return
        if ENV('NOCVT') and text.startswith('v_cvt'):
            return
        if ENV('NOPV') and text.startswith('v_mfma') and text.split()[1].startswith('v[') and int(text.split()[1][2:].split(':')[0]) < 64:
            return
    _orig_call(self, text)
Asm.__call__ = _filt
uid = [0]
def newlab(p):
    uid[0] += 1
    return 'L_%s_%d' % (p, uid[0])

def vr(base, n):
    return 'v[%d:%d]' % (base, base + n - 1)

def assume(text):
    a.hist.append(parse(text))

STAMPS = ENV('STAMPS')
stamp_n = [0]
def stamp():
    if not STAMPS:
        return
    k = stamp_n[0]
    stamp_n[0] += 1
    a('s_waitcnt lgkmcnt(0)')
    a('s_memtime s[76:77]')
    a('s_waitcnt lgkmcnt(0)')
    a(f's_mov_b32 s{80 + k}, s76')
    if k == 0:
        a('s_memrealtime s[76:77]')
        a('s_waitcnt lgkmcnt(0)')
        a('s_mov_b32 s94, s76')
def stamp_store():
    if not STAMPS:
        return
    stamp()
    a('s_memrealtime s[76:77]')
    a('s_waitcnt lgkmcnt(0)')
    a('s_mov_b32 s95, s76')
    a('s_load_dwordx2 s[76:77], s[0:1], 40')
    a('s_waitcnt lgkmcnt(0)')
    a('s_mov_b32 s78, 0x10000000')
    a('s_mov_b32 s79, 0x00020000')
    a(f's_lshl_b32 s53, s2, 3')
    a(f's_add_u32 s53, s53, s{sW}')
    a('s_lshl_b32 s53, s53, 6')
    a(f'v_mov_b32 v{TMP}, 0')
    for k in range(stamp_n[0]):
        a(f'v_mov_b32 v{TMP + 1}, s{80 + k}')
        a(f'buffer_store_dword v{TMP + 1}, v{TMP}, s[76:79], s53 offen offset:{4 * k}')
        a('s_nop 2')
    for k in (14, 15):
        a(f'v_mov_b32 v{TMP + 1}, s{80 + k}')
        a(f'buffer_store_dword v{TMP + 1}, v{TMP}, s[76:79], s53 offen offset:{4 * k}')
        a('s_nop 2')

def dma_pair(which, soff):
    if which == 'K':
        a(f'buffer_load_dwordx4 v{VOK0}, s[12:15], s{soff} offen lds')
        a(f'buffer_load_dwordx4 v{VOK1}, s[12:15], s{soff} offen offset:1024 lds')
    else:
        a(f'buffer_load_dwordx4 v{VOV}, s[16:19], s{soff} offen lds')
        a(f'buffer_load_dwordx4 v{VOV}, s[16:19], s{soff} offen offset:1024 lds')

def issue(which):
    ptr, m, off = (sKQ, sMK, sKOFF) if which == 'K' else (sVQ, sMV, sVOFF)
    skip = newlab('skipdma')
    a(f'v_readlane_b32 s{off}, v{TAB}, s{ptr}')
    a(f's_cmp_ge_u32 s{ptr}, s{sN}')
    a(f's_cbranch_scc1 {skip}')
    a(f's_mov_b32 m0, s{m}')
    a(f's_add_u32 s{ptr}, s{ptr}, 1')
    a(f's_add_u32 s{m}, s{m}, 0x4000')
    if which == 'K':
        a(f's_and_b32 s{m}, s{m}, 0xffff')
    else:
        a(f's_and_b32 s{m}, s{m}, 0xffff')
        a(f's_or_b32 s{m}, s{m}, 0x10000')
    dma_pair(which, off)
    a.label(skip)

def hk_parts(dma, sphase=False):
    sync = ['s_waitcnt vmcnt(8) lgkmcnt(0)' if sphase else 's_waitcnt vmcnt(4)']
    if not ENV('NOBAR'):
        sync.append('s_barrier')
    post = []
    if dma:
        d = lambda t: [] if ENV('NODMA') else [t]
        post = [
            [f's_mov_b32 m0, s{sMK}', f's_add_u32 s{sMK}, s{sMK}, 0x4000'] + d(f'buffer_load_dwordx4 v{VOK0}, s[12:15], s{sKOFF} offen lds'),
            [f's_and_b32 s{sMK}, s{sMK}, 0xffff'] + d(f'buffer_load_dwordx4 v{VOK1}, s[12:15], s{sKOFF} offen offset:1024 lds'),
            [f's_mov_b32 m0, s{sMV}', f's_add_u32 s{sMV}, s{sMV}, 0x4000'] + d(f'buffer_load_dwordx4 v{VOV}, s[16:19], s{sVOFF} offen lds'),
            [f's_and_b32 s{sMV}, s{sMV}, 0xffff'] + d(f'buffer_load_dwordx4 v{VOV}, s[16:19], s{sVOFF} offen offset:1024 lds'),
            [f's_or_b32 s{sMV}, s{sMV}, 0x10000', f's_add_u32 s{sKQ}, s{sKQ}, 1'],
            [f's_add_u32 s{sVQ}, s{sVQ}, 1', f'v_readlane_b32 s{sKOFF}, v{TAB}, s{sKQ}'],
            [f'v_readlane_b32 s{sVOFF}, v{TAB}, s{sVQ}'],
        ]
    return sync, post

def load_offs():
    a(f'v_readlane_b32 s{sKOFF}, v{TAB}, s{sKQ}')
    a(f'v_readlane_b32 s{sVOFF}, v{TAB}, s{sVQ}')

def kread(j, off):
    a(f'ds_read_b128 {vr(F + 4 * j, 4)}, v{AK + j} offset:{off}')

def vread(j, off):
    t, db = j // 4, j % 4
    a(f'ds_read_b64_tr_b16 {vr(F + 4 * j, 2)}, v{AV + db} offset:{off + (16 * t) * 256}')
    a(f'ds_read_b64_tr_b16 {vr(F + 4 * j + 2, 2)}, v{AV + db} offset:{off + (16 * t + 8) * 256}')

def pv_mfma(j):
    t, db = j // 4, j % 4
    a(f'v_mfma_f32_32x32x16_bf16 {vr(O + 16 * db, 16)}, {vr(F + 4 * j, 4)}, {vr(P + 4 * t, 4)}, {vr(O + 16 * db, 16)}')

def qk_mfma(j, sb):
    c = NEGM if j == 0 else S[sb]
    a(f'v_mfma_f32_32x32x16_bf16 {vr(S[sb], 16)}, {vr(F + 4 * j, 4)}, {vr(Q + 4 * j, 4)}, {vr(c, 16)}')

def setpos(snew):
    t1 = sT0 + 7
    for pos, base, n in ((sPOSK, AK, 8), (sPOSV, AV, 4)):
        a(f's_sub_u32 s{t1}, s{snew}, s{pos}')
        a(f's_mov_b32 s{pos}, s{snew}')
        for k in range(n):
            a(f'v_add_u32 v{base + k}, s{t1}, v{base + k}')

def toggle_ops(which):
    pos, base, n = (sPOSK, AK, 8) if which == 'K' else (sPOSV, AV, 4)
    return [f's_xor_b32 s{pos}, s{pos}, 0x8000'] + [f'v_xor_b32 v{base + k}, 0x8000, v{base + k}' for k in range(n)]

def sm_plan(b):
    s = S[b]
    e = lambda r: f'v_exp_f32 v{T + r % 8}, v{s + r}'
    def ad(r):
        if r == 1:
            return f'v_add_f32 v{SU}, v{T}, v{T + 1}'
        return f'v_add_f32 v{SU}, v{SU}, v{T + r % 8}'
    c = lambda k: f'v_cvt_pk_bf16_f32 v{P + k}, v{T + (2 * k) % 8}, v{T + (2 * k + 1) % 8}'
    plan = {
        1: [e(0), e(1)], 2: [e(2), e(3), ad(1)], 3: [e(4), e(5), ad(2), c(0)],
        4: [e(6), e(7), ad(3), c(1)], 5: [e(8), ad(4), ad(5), c(2)], 6: [e(9), ad(6), ad(7), c(3)],
        7: [e(10), ad(8)], 8: [e(11), ad(9), c(4)], 9: [e(12), ad(10)], 10: [e(13), ad(11), c(5)],
        11: [e(14), ad(12)], 12: [e(15), ad(13), c(6)], 13: [ad(14)], 14: [ad(15), c(7)],
        15: [f'v_cmp_lt_f32 vcc, s{sTHR}, v{SU}'],
    }
    return plan

def mask_code(b):
    s = S[b]
    cr = [8 * (r // 4) + r % 4 for r in range(16)]
    pend = []
    for r in range(16):
        sp = sC + 2 * (r % 4)
        a(f'v_cmp_le_i32_e64 s[{sp}:{sp + 1}], {cr[r]}, v{JJ}')
        pend.append((r, sp))
        if len(pend) == 4:
            rr, spp = pend.pop(0)
            a(f'v_cndmask_b32_e64 v{s + rr}, v{NINF}, v{s + rr}, s[{spp}:{spp + 1}]')
    for rr, spp in pend:
        a(f'v_cndmask_b32_e64 v{s + rr}, v{NINF}, v{s + rr}, s[{spp}:{spp + 1}]')

rare_sites = []

class DSQ:
    def __init__(self, init):
        self.q = list(init)
        self.done = 0
    def push(self, tag):
        self.q.append(tag)
    def need(self, tags):
        last = max([i for i, t in enumerate(self.q) if t in tags], default=-1)
        if last < self.done:
            return
        n = len(self.q) - 1 - last
        assert n <= 15
        a(f's_waitcnt lgkmcnt({n})')
        self.done = last + 1

def stage(name, b, has_prev, has_next, koff, voff, hk=None, ylate=False,
          ktog=False, vtog=False, maskable=False):
    a.label(name)
    in_stage[0] = True
    assume(f'v_mfma_f32_32x32x16_bf16 {vr(S[b], 16)}, {vr(F, 4)}, {vr(Q, 4)}, {vr(S[b], 16)}')
    assume('s_nop 1')
    assume(f'v_cvt_pk_bf16_f32 v{P + 7}, v{T}, v{T + 1}')
    plan = sm_plan(b)
    dq = DSQ([('V', j) for j in range(8) for _ in range(2)] if has_prev else [])
    sync, post = hk_parts(hk in ('dma', 'sdma'), hk in ('sdma', 'ssync')) if (hk and not ENV('NOHK')) else ([], [])
    if hk == 'gsync':
        sync, post = ['s_waitcnt vmcnt(0)', 's_barrier'], []
    ylate = ylate and has_prev and bool(sync)
    bar_gap = int(ENV('BARGAP') or 4) if ylate else 0
    def kr(j):
        kread(j, koff); dq.push(('K', j))
    def vrd(j):
        vread(j, voff); dq.push(('V2', j)); dq.push(('V2', j))
    if ktog:
        for op in toggle_ops('K'):
            a(op)
    vt = toggle_ops('V') if vtog else []
    if not has_next:
        for op in vt:
            a(op)
        vt = []
    if not ylate:
        for op in sync:
            a(op)
            if 'lgkmcnt(0)' in op:
                dq.done = len(dq.q)
    if maskable:
        mask_code(b)
    if not has_prev:
        for j in range(8):
            if has_next:
                kr(j)
            else:
                vrd(j)
    g1reads = {g: [g] for g in range(8)}
    if ylate:
        g1reads = {4: [0, 1], 5: [2, 3], 6: [4, 5], 7: [6, 7]} if bar_gap == 4 else {2: [0, 1], 3: [2, 3], 4: [4], 5: [5], 6: [6], 7: [7]} if bar_gap == 2 else {6: [0, 1, 2, 3], 7: [4, 5, 6, 7]}
    for g in range(16):
        if ylate and g == bar_gap:
            for op in sync:
                a(op)
                if 'lgkmcnt(0)' in op:
                    dq.done = len(dq.q)
        if g < 8:
            j = g
            if has_prev:
                if j % 2 == 0:
                    dq.need({('V', j), ('V', j + 1)})
                pv_mfma(j)
                for jj in g1reads.get(g, []):
                    if has_next:
                        kr(jj)
                    else:
                        vrd(jj)
        else:
            j = g - 8
            if has_next:
                if j % 2 == 0:
                    dq.need({('K', j), ('K', j + 1)})
                qk_mfma(j, 1 - b)
                vrd(j)
        k = g - bar_gap - int(ENV('POSTSHIFT') or 0)
        if ENV('POSTSPREAD'):
            k = (g - bar_gap) // 2 if (g - bar_gap) % 2 == 0 and g >= bar_gap else -1
        if 0 <= k < len(post):
            for op in post[k]:
                a(op)
        for op in plan.get(g, []):
            a(op)
        if g == 6:
            for op in vt:
                a(op)
    site = newlab('rare')
    back = newlab('back')
    a(f's_cbranch_vccnz {site}')
    a.label(back)
    a(f'v_add_f32 v{L}, v{L}, v{SU}')
    rare_sites.append((site, back, b, has_next))
    in_stage[0] = False

def prescale_frag(j):
    for r in range(4 * j, 4 * j + 4):
        t0, t1 = TMP + (2 * r) % 8, TMP + (2 * r + 1) % 8
        a(f'v_lshlrev_b32 v{t0}, 16, v{Q + r}')
        a(f'v_and_b32 v{t1}, 0xffff0000, v{Q + r}')
        a(f'v_mul_f32 v{t0}, s{sSC}, v{t0}')
        a(f'v_mul_f32 v{t1}, s{sSC}, v{t1}')
        a(f'v_cvt_pk_bf16_f32 v{Q + r}, v{t0}, v{t1}')

def max_init():
    s = S[0]
    t0, t1, dl = TMP, TMP + 1, TMP + 2
    a(f'v_max3_f32 v{t0}, v{s}, v{s + 1}, v{s + 2}')
    for r in range(3, 15, 2):
        a(f'v_max3_f32 v{t0}, v{t0}, v{s + r}, v{s + r + 1}')
    a(f'v_max_f32 v{t0}, v{t0}, v{s + 15}')
    a(f'v_mov_b32 v{t1}, v{t0}')
    a(f'v_permlane32_swap_b32 v{t0}, v{t1}')
    a(f'v_max_f32 v{dl}, v{t0}, v{t1}')
    for r in range(16):
        a(f'v_sub_f32 v{s + r}, v{s + r}, v{dl}')
    for r in range(16):
        a(f'v_sub_f32 v{NEGM + r}, 0, v{dl}')
    a(f's_mov_b32 s{sTHR}, {THR:#x}')
    a(f's_mov_b32 s{sLO}, 0')

def head(koff, jit=False, init=None):
    if not jit:
        a.fence()
    for j in range(8):
        kread(j, koff)
    extra = ['V', 'K', 'V', 'K'] if jit else []
    for j in range(8):
        if jit:
            a(f's_waitcnt lgkmcnt({15 - j})')
            prescale_frag(j)
        if j % 2 == 0:
            a(f's_waitcnt lgkmcnt({6 - j})')
        qk_mfma(j, 0)
        if jit and j % 2 == 1:
            issue(extra[j // 2])
    if init == 'always':
        max_init()
    elif init == 'cond':
        sk = newlab('noinit')
        a(f's_cmp_eq_u32 s{sLO}, 0')
        a(f's_cbranch_scc1 {sk}')
        max_init()
        a.label(sk)

def tail():
    assume(f'v_cvt_pk_bf16_f32 v{P + 7}, v{T}, v{T + 1}')
    assume(f'v_cvt_pk_bf16_f32 v{P}, v{T}, v{T + 1}')
    for j in range(8):
        if j % 2 == 0:
            a(f's_waitcnt lgkmcnt({12 - 2 * j})')
        pv_mfma(j)
    a.fence()

def rare_body(b, fix):
    a.label(f'L_rarebody_{b}_{int(fix)}')
    a.fence()
    s = S[b]
    t0, t1, dl, f = TMP, TMP + 1, TMP + 2, TMP + 3
    a(f'v_max3_f32 v{t0}, v{s}, v{s + 1}, v{s + 2}')
    for r in range(3, 15, 2):
        a(f'v_max3_f32 v{t0}, v{t0}, v{s + r}, v{s + r + 1}')
    a(f'v_max_f32 v{t0}, v{t0}, v{s + 15}')
    a(f'v_mov_b32 v{t1}, v{t0}')
    a(f'v_permlane32_swap_b32 v{t0}, v{t1}')
    a(f'v_max3_f32 v{dl}, v{t0}, v{t1}, s{sLO}')
    a(f'v_max_f32 v{t0}, 0, v{dl}')
    a(f'v_exp_f32_e64 v{f}, -v{t0}')
    for r in range(16):
        a(f'v_sub_f32 v{NEGM + r}, v{NEGM + r}, v{dl}')
    for r in range(16):
        a(f'v_sub_f32 v{s + r}, v{s + r}, v{dl}')
    if fix:
        for r in range(16):
            a(f'v_sub_f32 v{S[1 - b] + r}, v{S[1 - b] + r}, v{dl}')
    sk = newlab('norescale')
    a(f's_cmp_lg_u32 s{sLO}, 0')
    a(f's_cbranch_scc1 {sk}')
    a(f'v_mul_f32 v{L}, v{L}, v{f}')
    for r in range(64):
        a(f'v_mul_f32 v{O + r}, v{O + r}, v{f}')
    a.label(sk)
    for half in range(2):
        for r in range(8):
            a(f'v_exp_f32 v{T + r}, v{s + 8 * half + r}')
        for r in range(8):
            if half == 0 and r == 0:
                continue
            if half == 0 and r == 1:
                a(f'v_add_f32 v{SU}, v{T}, v{T + 1}')
            else:
                a(f'v_add_f32 v{SU}, v{SU}, v{T + r}')
        for k in range(4):
            a(f'v_cvt_pk_bf16_f32 v{P + 4 * half + k}, v{T + 2 * k}, v{T + 2 * k + 1}')
    a(f's_mov_b32 s{sTHR}, {THR:#x}')
    a(f's_mov_b32 s{sLO}, 0')
    a('s_nop 1')
    a(f's_setpc_b64 s[{sRET2}:{sRET2 + 1}]')

def store_block(dbs, inv, srow):
    for n, db in enumerate(dbs):
        for h2 in range(2):
            base = O + 16 * db + 8 * h2
            c = 212 + 4 * ((2 * n + h2) % 2)
            for r in range(8):
                a(f'v_mul_f32 v{base + r}, v{base + r}, v{inv}')
            for k in range(4):
                a(f'v_cvt_pk_bf16_f32 v{c + k}, v{base + 2 * k}, v{base + 2 * k + 1}')
            a(f'v_permlane32_swap_b32 v{c}, v{c + 2}')
            a(f'v_permlane32_swap_b32 v{c + 1}, v{c + 3}')
            a(f'buffer_store_dwordx4 {vr(c, 4)}, v{QOFF}, s[20:23], s{srow} offen offset:{db * 64 + h2 * 32}' + (' ' + ENV('STFLAG') if ENV('STFLAG') else ''))

def store_block_lds(inv, srow):
    wa, ra, ga = S[0], S[0] + 1, S[0] + 2
    t0, t1 = S[0] + 3, S[0] + 4
    a(f's_lshl_b32 s53, s{sW}, 12')
    a(f's_add_u32 s53, s53, {LDS_STASH}')
    a(f'v_and_b32 v{t0}, 31, v{LANE}')
    a(f'v_lshrrev_b32 v{t1}, 5, v{LANE}')
    a(f'v_and_b32 v{wa}, 7, v{t0}')
    a(f'v_xor_b32 v{wa}, v{wa}, v{t1}')
    a(f'v_lshlrev_b32 v{t0}, 7, v{t0}')
    a(f'v_add_u32 v{t0}, s53, v{t0}')
    for q in range(4):
        a(f'v_xor_b32 v{t1}, {2 * q}, v{wa}')
        a(f'v_lshl_add_u32 v{S[1] + q}, v{t1}, 4, v{t0}')
    a(f'v_lshrrev_b32 v{t0}, 3, v{LANE}')
    a(f'v_and_b32 v{t1}, 7, v{LANE}')
    a(f'v_xor_b32 v{ra}, v{t0}, v{t1}')
    a(f'v_lshlrev_b32 v{ra}, 4, v{ra}')
    a(f'v_lshl_add_u32 v{ra}, v{t0}, 7, v{ra}')
    a(f'v_add_u32 v{ra}, s53, v{ra}')
    a(f'v_lshlrev_b32 v{ga}, 4, v{t1}')
    a(f'v_lshl_add_u32 v{ga}, v{t0}, 8, v{ga}')
    for rnd in range(2):
        for q in range(4):
            db, h2 = 2 * rnd + q // 2, q % 2
            base = O + 16 * db + 8 * h2
            c = F + 4 * q
            for r in range(8):
                a(f'v_mul_f32 v{base + r}, v{base + r}, v{inv}')
            for k in range(4):
                a(f'v_cvt_pk_bf16_f32 v{c + k}, v{base + 2 * k}, v{base + 2 * k + 1}')
            a(f'v_permlane32_swap_b32 v{c}, v{c + 2}')
            a(f'v_permlane32_swap_b32 v{c + 1}, v{c + 3}')
            if rnd == 1 and q == 0:
                a('s_waitcnt lgkmcnt(0)')
            a(f'ds_write_b128 v{S[1] + q}, {vr(c, 4)}')
        a('s_waitcnt lgkmcnt(0)')
        for k in range(4):
            a(f'ds_read_b128 {vr(F + 16 + 4 * k, 4)}, v{ra} offset:{1024 * k}')
        for k in range(4):
            a(f's_waitcnt lgkmcnt({3 - k})')
            fl = ' ' + (ENV('STFLAG') or 'sc1')
            a(f'buffer_store_dwordx4 {vr(F + 16 + 4 * k, 4)}, v{ga}, s[20:23], s{srow if k < 2 else 54} offen offset:{2048 * (k % 2) + 128 * rnd}' + fl)

def reset_state():
    for r in range(64):
        a(f'v_mov_b32 v{O + r}, 0')
    for r in range(16):
        a(f'v_mov_b32 v{NEGM + r}, 0')
    a(f'v_mov_b32 v{L}, 0')
    a(f's_mov_b32 s{sTHR}, -1.0')
    a(f's_mov_b32 s{sLO}, 0xff800000')

def prescale_q():
    a(f's_mov_b32 s53, {f32bits(SCALE):#x}')
    for r in range(32):
        t0, t1 = TMP + (2 * r) % 8, TMP + (2 * r + 1) % 8
        a(f'v_lshlrev_b32 v{t0}, 16, v{Q + r}')
        a(f'v_and_b32 v{t1}, 0xffff0000, v{Q + r}')
        a(f'v_mul_f32 v{t0}, s53, v{t0}')
        a(f'v_mul_f32 v{t1}, s53, v{t1}')
        a(f'v_cvt_pk_bf16_f32 v{Q + r}, v{t0}, v{t1}')

def call(label, ret):
    a(f's_call_b64 s[{ret}:{ret + 1}], {label}')

a.label(KNAME)
a('s_cmp_ge_u32 s2, 256')
a('s_cbranch_scc1 L_END')
stamp()
a('s_load_dwordx4 s[4:7], s[0:1], 0')
a('s_load_dwordx4 s[48:51], s[0:1], 16')
l32, h, l16, g4, r4, c4 = TMP, TMP + 1, TMP + 2, TMP + 3, TMP + 4, TMP + 5
x, y, z = TMP + 6, TMP + 7, TMP + 8
a(f'v_lshrrev_b32 v{x}, 6, v0')
a(f'v_and_b32 v{LANE}, 63, v0')
a(f'v_readfirstlane_b32 s{sW}, v{x}')
if ENV('CPF'):
    a('s_getpc_b64 s[90:91]')
    a(f'v_lshlrev_b32 v{y}, 7, v0')
    a(f's_cmp_ge_u32 s{sW}, 3')
    a('s_cbranch_scc1 L_NOCPF')
    a(f'global_load_dword v{XADDR}, v{y}, s[90:91]')
    a.label('L_NOCPF')
a('s_and_b32 s52, s2, 7')
a('s_lshr_b32 s53, s2, 3')
a('s_and_b32 s54, s53, 3')
a('s_lshl_b32 s52, s52, 2')
a('s_add_u32 s52, s52, s54')
a(f's_lshr_b32 s{sI}, s53, 2')
a('s_lshl_b32 s52, s52, 19')
a(f'v_and_b32 v{l32}, 31, v{LANE}')
a(f'v_lshrrev_b32 v{h}, 5, v{LANE}')
a(f'v_and_b32 v{l16}, 15, v{LANE}')
a(f'v_lshrrev_b32 v{g4}, 4, v{LANE}')
a(f's_and_b32 s{sWQ}, s{sW}, 3')
a(f's_lshl_b32 s{sKEYB}, s{sI}, 7')
a(f's_sub_u32 s{sKEYA}, 1920, s{sKEYB}')
a(f's_lshl_b32 s{sW2K}, s{sW}, 11')
a(f's_sub_u32 s53, 3, s{sWQ}')
a('s_lshl_b32 s53, s53, 5')
a(f's_add_u32 s53, s53, s{sKEYA}')
a(f's_lshl_b32 s{sROW}, s53, 8')
a(f'v_lshlrev_b32 v{x}, 8, v{l32}')
a(f'v_lshl_add_u32 v{QOFF}, v{h}, 4, v{x}')
a(f's_and_b32 s53, s{sW}, 1')
a('s_lshl_b32 s53, s53, 3')
a(f'v_add_u32 v{y}, s53, v{g4}')
a(f'v_xor_b32 v{y}, v{y}, v{l16}')
a(f'v_lshlrev_b32 v{x}, 8, v{g4}')
a(f'v_lshl_add_u32 v{VOK0}, v{y}, 4, v{x}')
a(f'v_xor_b32 v{y}, 4, v{y}')
a(f'v_lshl_add_u32 v{VOK1}, v{y}, 4, v{x}')
a(f's_add_u32 s{sKOFF}, s{sW2K}, {896 * 256}')
if ENV('ASC'):
    a(f's_lshl_b32 s{sKOFF}, s{sKEYB}, 8')
    a(f's_add_u32 s{sKOFF}, s{sKOFF}, s{sW2K}')
if ENV('DESC'):
    a(f's_sub_u32 s{sKOFF}, s{sKEYA}, 64')
    a(f's_lshl_b32 s{sKOFF}, s{sKOFF}, 8')
    a(f's_add_u32 s{sKOFF}, s{sKOFF}, s{sW2K}')
a(f's_mov_b32 m0, s{sW2K}')
a('s_mov_b32 s10, 0x80000')
a('s_mov_b32 s11, 0x00020000')
a('s_mov_b32 s14, 0x80000')
a('s_mov_b32 s15, 0x00020000')
a('s_mov_b32 s18, 0x80000')
a('s_mov_b32 s19, 0x00020000')
a(f'v_lshlrev_b32 v{y}, 2, v{g4}')
a(f'v_xor_b32 v{y}, v{y}, v{l16}')
a(f'v_lshl_add_u32 v{VOV}, v{y}, 4, v{x}')
a('s_waitcnt lgkmcnt(0)')
if ENV('PSTAMPS'): stamp()
a('s_add_u32 s8, s4, s52')
a('s_addc_u32 s9, s5, 0')
a('s_add_u32 s12, s6, s52')
a('s_addc_u32 s13, s7, 0')
a('s_add_u32 s16, s48, s52')
a('s_addc_u32 s17, s49, 0')
dma_pair('K', sKOFF)
a(f's_lshl_b32 s53, s{sKEYA}, 8')
a(f's_add_u32 s53, s53, s{sW2K}')
a(f's_add_u32 s54, s{sW2K}, {LDS_STASH}')
a('s_mov_b32 m0, s54')
a('s_add_u32 s55, s53, 16384')
a(f'buffer_load_dwordx4 v{VOK0}, s[8:11], s53 offen' + QNT + ' lds')
a(f'buffer_load_dwordx4 v{VOK1}, s[8:11], s53 offen offset:1024' + QNT + ' lds')
a('s_add_u32 s54, s54, 16384')
a('s_mov_b32 m0, s54')
a('s_nop 0')
a(f'buffer_load_dwordx4 v{VOK0}, s[8:11], s55 offen' + QNT + ' lds')
a(f'buffer_load_dwordx4 v{VOK1}, s[8:11], s55 offen offset:1024' + QNT + ' lds')
a(f's_add_u32 s54, s{sW2K}, 0x10000')
a('s_mov_b32 m0, s54')
a(f's_add_u32 s55, s{sKOFF}, 16384')
dma_pair('V', sKOFF)
a(f's_add_u32 s54, s{sW2K}, 0x4000')
a('s_mov_b32 m0, s54')
a('s_nop 0')
dma_pair('K', 55)
a('s_add_u32 s20, s50, s52')
a('s_addc_u32 s21, s51, 0')
a('s_mov_b32 s22, 0x80000')
a('s_mov_b32 s23, 0x00020000')
a(f's_lshr_b32 s{sG}, s{sW}, 2')
a(f's_lshl_b32 s{s2I}, s{sI}, 1')
a(f's_sub_u32 s{sN}, 34, s{s2I}')
a(f's_lshl_b32 s53, s{sI}, 2')
a(f's_sub_u32 s{sNS}, 30, s53')
a(f's_lshl_b32 s53, s{sWQ}, 5')
a(f's_add_u32 s53, s53, s{sKEYB}')
a(f's_lshl_b32 s{sROWB}, s53, 8')
a(f's_sub_u32 s53, 4, s{sWQ}')
a(f's_add_u32 s54, s{sWQ}, 1')
a(f's_cmp_eq_u32 s{sG}, 0')
a(f's_cselect_b32 s{sNW}, s53, s54')
a(f's_mov_b32 s{sKQ}, 2')
a(f's_mov_b32 s{sVQ}, 1')
a(f's_add_u32 s{sMK}, s{sW2K}, 0x8000')
a(f's_add_u32 s{sMV}, s{sW2K}, 0x14000')
a(f'v_bfe_u32 v{r4}, v{LANE}, 2, 2')
a(f'v_and_b32 v{c4}, 3, v{LANE}')
a(f'v_lshrrev_b32 v{x}, 1, v{LANE}')
a(f'v_lshlrev_b32 v{x}, 6, v{x}')
a(f'v_sub_u32 v{y}, 896, v{x}')
a(f'v_add_u32 v{x}, 960, v{x}')
a(f'v_and_b32 v{z}, 1, v{LANE}')
a(f'v_cmp_eq_u32 vcc, 1, v{z}')
a(f'v_cndmask_b32 v{TAB}, v{y}, v{x}, vcc')
if ENV('ASC'):
    a(f'v_lshlrev_b32 v{TAB}, 6, v{LANE}')
    a(f'v_add_u32 v{TAB}, s{sKEYB}, v{TAB}')
if ENV('DESC'):
    a(f'v_lshlrev_b32 v{TAB}, 6, v{LANE}')
    a(f'v_sub_u32 v{TAB}, s{sKEYA}, v{TAB}')
    a(f'v_subrev_u32 v{TAB}, 64, v{TAB}')
a(f'v_subrev_u32 v{x}, s{sNS}, v{LANE}')
a(f'v_lshlrev_b32 v{y}, 6, v{x}')
a(f'v_cmp_le_i32 vcc, 0, v{x}')
a(f'v_cndmask_b32 v{TAB}, v{TAB}, v{y}, vcc')
a(f'v_subrev_u32 v{x}, s{s2I}, v{x}')
a(f'v_and_b32 v{z}, 1, v{x}')
a(f'v_mov_b32 v{y}, s{sKEYA}')
a(f'v_mov_b32 v{TMP + 9}, s{sKEYB}')
a(f'v_cmp_eq_u32 vcc, 1, v{z}')
a(f'v_cndmask_b32 v{y}, v{y}, v{TMP + 9}, vcc')
a(f'v_lshrrev_b32 v{z}, 1, v{x}')
a(f'v_and_b32 v{z}, 1, v{z}')
a(f'v_lshl_add_u32 v{y}, v{z}, 6, v{y}')
a(f'v_cmp_le_i32 vcc, 0, v{x}')
a(f'v_cndmask_b32 v{TAB}, v{TAB}, v{y}, vcc')
a(f'v_lshlrev_b32 v{TAB}, 8, v{TAB}')
a(f'v_add_u32 v{TAB}, s{sW2K}, v{TAB}')
a(f's_lshl_b32 s{sPOSK}, s{sG}, 13')
a(f's_mov_b32 s{sPOSV}, s{sPOSK}')
a(f'v_lshlrev_b32 v{x}, 8, v{l32}')
a(f'v_add_u32 v{x}, s{sPOSK}, v{x}')
for s_ in range(8):
    a(f'v_add_u32 v{y}, {2 * s_}, v{h}')
    a(f'v_xor_b32 v{y}, v{y}, v{l16}')
    a(f'v_lshl_add_u32 v{AK + s_}, v{y}, 4, v{x}')
a(f'v_lshl_add_u32 v{x}, v{h}, 2, v{r4}')
a(f'v_lshlrev_b32 v{x}, 8, v{x}')
a(f'v_add_u32 v{x}, {LDS_V}, v{x}')
a(f'v_add_u32 v{x}, s{sPOSV}, v{x}')
a(f'v_and_b32 v{y}, 1, v{c4}')
a(f'v_lshl_add_u32 v{x}, v{y}, 3, v{x}')
a(f'v_and_b32 v{y}, 1, v{g4}')
a(f'v_lshl_add_u32 v{x}, v{y}, 5, v{x}')
a(f'v_lshrrev_b32 v{y}, 1, v{c4}')
a(f'v_lshl_add_u32 v{x}, v{y}, 4, v{x}')
for db in range(4):
    a(f'v_xor_b32 v{y}, {db}, v{r4}')
    a(f'v_lshl_add_u32 v{AV + db}, v{y}, 6, v{x}')
a(f'v_lshlrev_b32 v{y}, 2, v{h}')
a(f'v_sub_u32 v{JJ}, v{l32}, v{y}')
a(f'v_mov_b32 v{NINF}, 0xff800000')
a(f'v_lshlrev_b32 v{XADDR}, 4, v{LANE}')
reset_state()
if ENV('PSTAMPS'): stamp()
a('s_waitcnt vmcnt(4)')
if ENV('PSTAMPS'): stamp()
stamp()
a('s_barrier')
a(f's_sub_u32 s53, 3, s{sWQ}')
a('s_lshl_b32 s53, s53, 13')
a(f's_add_u32 s54, s53, {LDS_STASH}')
a(f's_sub_u32 s54, s54, s{sPOSK}')
for s_ in range(8):
    a(f'v_add_u32 v{S[0] + s_}, s54, v{AK + s_}')
for s_ in range(8):
    a(f'ds_read_b128 {vr(Q + 4 * s_, 4)}, v{S[0] + s_}')
a(f's_mov_b32 s{sSC}, {f32bits(SCALE):#x}')
def stage_qb():
    for n_ in range(2):
        a(f's_lshl_b32 s53, s{sKEYB}, 8')
        a(f's_add_u32 s53, s53, s{sW2K}')
        if n_:
            a('s_add_u32 s53, s53, 16384')
        a(f's_add_u32 s54, s{sW2K}, {LDS_STASH + 16384 * n_}')
        a('s_mov_b32 m0, s54')
        a('s_nop 0')
        a(f'buffer_load_dwordx4 v{VOK0}, s[8:11], s53 offen' + QNT + ' lds')
        a(f'buffer_load_dwordx4 v{VOK1}, s[8:11], s53 offen offset:1024' + QNT + ' lds')
a(f's_sub_u32 s{sCNT}, 7, s{sI}')
a(f's_min_u32 s{sMASK}, s{sCNT}, 1')
head(0, jit=True, init='always')
load_offs()
if ENV('PSTAMPS'): stamp()
if ENV('PRIOX'):
    a('s_setprio 1')
a(f's_cmp_lg_u32 s{sG}, 0')
a('s_cbranch_scc1 L_S_PRE_Y')
for grp in ('X', 'Y'):
    yl = grp == 'Y'
    if yl:
        a.label('L_S_PRE_Y')
        if ENV('PRIOY'):
            a('s_setprio 1')
        if ENV('PRIOX'):
            a('s_setprio 0')
    stage(f'L_S_FIRST_{grp}', 0, False, True, 16384, 0, hk='sdma')
    a.label(f'L_S_LOOP_{grp}')
    a(f's_cmp_gt_u32 s{sCNT}, 1')
    a(f's_cbranch_scc1 L_S_GO_{grp}')
    a(f's_cmp_eq_u32 s{sCNT}, s{sMASK}')
    a(f's_cbranch_scc0 L_S_NOQB_{grp}')
    stage_qb()
    a.label(f'L_S_NOQB_{grp}')
    a(f's_cmp_eq_u32 s{sCNT}, 0')
    a(f's_cbranch_scc1 L_S_LAST_{grp}')
    a.label(f'L_S_GO_{grp}')
    a(f's_sub_u32 s{sCNT}, s{sCNT}, 1')
    for p in (1, 2, 3, 0):
        stage(f'L_S_MID{p}_{grp}', p & 1, True, True, ((p + 1) & 3) * 16384, p * 16384, hk='sdma', ylate=yl)
    a(f's_branch L_S_LOOP_{grp}')
    stage(f'L_S_LAST_{grp}', 1, True, False, 0, 16384, hk='ssync', ylate=yl)
    if grp == 'X':
        a('s_branch L_S_TAIL')
a.label('L_S_TAIL')
tail()
stamp()
a('s_waitcnt vmcnt(0)')
a('s_barrier')
a(f's_lshl_b32 s53, s{sWQ}, 13')
a(f's_add_u32 s54, s53, {LDS_V}')
a(f'v_add_u32 v{TMP}, s54, v{XADDR}')
a(f's_add_u32 s54, s53, {LDS_STASH}')
a(f'v_add_u32 v{TMP + 1}, s54, v{XADDR}')
a(f's_lshl_b32 s54, s{sWQ}, 10')
a('s_add_u32 s54, s54, 16384')
a(f'v_add_u32 v{TMP + 2}, s54, v{XADDR}')
a(f's_cmp_eq_u32 s{sG}, 0')
a('s_cbranch_scc1 L_MRG_X')
a(f's_add_u32 s54, s53, {LDS_STASH}')
a(f's_sub_u32 s54, s54, s{sPOSK}')
for s_ in range(8):
    a(f'v_add_u32 v{S[0] + s_}, s54, v{AK + s_}')
for s_ in range(8):
    a(f'ds_read_b128 {vr(Q + 4 * s_, 4)}, v{S[0] + s_}')
a(f'v_mov_b32 v{S[1]}, v{NEGM}')
a(f'v_mov_b32 v{S[1] + 1}, v{L}')
a(f'ds_write_b64 v{TMP + 2}, v[{S[1]}:{S[1] + 1}]')
for k in range(8):
    a(f'ds_write_b128 v{TMP}, {vr(O + 4 * k, 4)} offset:{1024 * k}')
a('s_waitcnt lgkmcnt(9)')
for k in range(8):
    a(f'ds_write_b128 v{TMP + 1}, {vr(O + 32 + 4 * k, 4)} offset:{1024 * k}')
a('s_waitcnt lgkmcnt(0)')
a('s_barrier')
prescale_q()
reset_state()
a(f's_mov_b32 s{sROW}, s{sROWB}')
a('s_branch L_MRG_J')
a.label('L_MRG_X')
a('s_barrier')
a(f'ds_read_b64 v[{P}:{P + 1}], v{TMP + 2}')
for k in range(8):
    a(f'ds_read_b128 {vr(S[0] + 4 * k, 4)}, v{TMP} offset:{1024 * k}')
for k in range(8):
    a(f'ds_read_b128 {vr(F + 4 * k, 4)}, v{TMP + 1} offset:{1024 * k}')
a('s_waitcnt lgkmcnt(15)')
nm, fo, fp = T, T + 1, T + 2
a(f'v_min_f32 v{nm}, v{NEGM}, v{P}')
a(f'v_sub_f32 v{fo}, v{nm}, v{NEGM}')
a(f'v_sub_f32 v{fp}, v{nm}, v{P}')
a(f'v_exp_f32 v{fo}, v{fo}')
a(f'v_exp_f32 v{fp}, v{fp}')
for r in range(16):
    a(f'v_mov_b32 v{NEGM + r}, v{nm}')
a(f'v_mul_f32 v{L}, v{L}, v{fo}')
a(f'v_fma_f32 v{L}, v{P + 1}, v{fp}, v{L}')
for r in range(64):
    a(f'v_mul_f32 v{O + r}, v{O + r}, v{fo}')
a('s_waitcnt lgkmcnt(8)')
for r in range(32):
    a(f'v_fma_f32 v{O + r}, v{S[0] + r}, v{fp}, v{O + r}')
a('s_waitcnt lgkmcnt(0)')
for r in range(32):
    a(f'v_fma_f32 v{O + 32 + r}, v{F + r}, v{fp}, v{O + 32 + r}')
a.label('L_MRG_J')
stamp()
a('s_waitcnt vmcnt(0)')
a('s_barrier')
issue('K'); issue('V')
a(f's_cmp_eq_u32 s{sI}, 0')
a('s_cbranch_scc1 L_G1_NOWAIT')
a(f's_sub_u32 s{sCNT}, s{sI}, 1')
a('s_mov_b32 s53, 0x8000')
setpos(53)
load_offs()
head(0, init='cond')
stage('L_D_FIRST', 0, False, True, 8192, 0)
a(f's_cmp_lg_u32 s{sG}, 0')
a('s_cbranch_scc1 L_D_MID1_Y')
for grp in ('X', 'Y'):
    yl = grp == 'Y'
    stage(f'L_D_MID1_{grp}', 1, True, True, 16384, 8192, hk='dma', ylate=yl)
    stage(f'L_D_MID2_{grp}', 0, True, True, 24576, 16384)
    a(f's_cmp_eq_u32 s{sCNT}, 0')
    a('s_cbranch_scc1 L_D_LAST')
    a(f's_sub_u32 s{sCNT}, s{sCNT}, 1')
    stage(f'L_D_MID3_{grp}', 1, True, True, 0, 24576, hk='dma', ylate=yl, ktog=True)
    stage(f'L_D_MID0_{grp}', 0, True, True, 8192, 0, vtog=True)
    a(f's_branch L_D_MID1_{grp}')
stage('L_D_LAST', 1, True, False, 0, 24576)
tail()
a('s_waitcnt vmcnt(0)')
a('s_barrier')
a.label('L_G1_NOWAIT')
stamp()
issue('V'); issue('K'); issue('V')
a(f's_add_u32 s53, s{s2I}, s{sG}')
a('s_add_u32 s53, s53, 2')
a('s_and_b32 s53, s53, 3')
a('s_lshl_b32 s53, s53, 14')
setpos(53)
head(0)
a(f's_cmp_eq_u32 s{sNW}, 1')
a('s_cbranch_scc1 L_G_SYNC1')
stage('L_G_FIRST', 0, False, True, 8192, 0)
a(f's_cmp_eq_u32 s{sNW}, 2')
a('s_cbranch_scc1 L_G_SYNC2')
stage('L_G_MID1', 1, True, True, 0, 8192, hk='gsync', ktog=True)
a(f's_cmp_eq_u32 s{sNW}, 3')
a('s_cbranch_scc1 L_G_LAST2')
stage('L_G_MID2', 0, True, True, 8192, 0, vtog=True)
stage('L_G_LAST1', 1, True, False, 0, 8192, maskable=True)
a('s_branch L_G_TAIL')
stage('L_G_LAST2', 0, True, False, 0, 0, vtog=True, maskable=True)
a('s_branch L_G_TAIL')
a.label('L_G_SYNC2')
a('s_waitcnt vmcnt(0)')
a('s_barrier')
a('s_branch L_G_LAST1')
a.label('L_G_SYNC1')
a('s_waitcnt vmcnt(0)')
a('s_barrier')
stage('L_G_ONLY', 0, False, False, 0, 0, maskable=True)
a.label('L_G_TAIL')
tail()
a.label('L_FIN')
stamp()
t0, t1 = TMP, TMP + 1
a(f'v_mov_b32 v{t0}, v{L}')
a(f'v_mov_b32 v{t1}, v{L}')
a(f'v_permlane32_swap_b32 v{t0}, v{t1}')
a(f'v_add_f32 v{t0}, v{t0}, v{t1}')
a(f'v_rcp_f32 v{t0}, v{t0}')
if ENV('OLDST'):
    store_block([0, 1, 2, 3], t0, sROW)
else:
    a(f's_add_u32 s54, s{sROW}, 4096')
    store_block_lds(t0, sROW)
stamp_store()
a.label('L_END')
a('s_endpgm')
for site, back, b, fx in rare_sites:
    a.label(site)
    call(f'L_rarebody_{b}_{int(fx)}', sRET2)
    a(f's_branch {back}')
for b in range(2):
    for fx in (False, True):
        rare_body(b, fx)

hdr = f"""; causal flash-attention forward, B=1 H=32 S=2048 D=128 bf16 (generated by gen/gen5.py)
; @launch grid=(256,1,1) block=(512,1,1) lds={LDS_BYTES}
.amdgcn_target "amdgcn-amd-amdhsa--gfx950"
.text
.globl {KNAME}
.p2align 8
.type {KNAME},@function
"""
ftr = f"""
.section .rodata,"a"
.p2align 6
.amdhsa_kernel {KNAME}
  .amdhsa_next_free_vgpr {NV}
  .amdhsa_next_free_sgpr 100
  .amdhsa_accum_offset {NV}
  .amdhsa_group_segment_fixed_size 0
  .amdhsa_kernarg_size 48
  .amdhsa_user_sgpr_count 2
  .amdhsa_user_sgpr_kernarg_segment_ptr 1
  .amdhsa_system_sgpr_workgroup_id_x 1
.end_amdhsa_kernel
"""
out = sys.argv[1] if len(sys.argv) > 1 else 'standalone__softmax_full_causal__prompt.s'
open(out, 'w').write(hdr + a.text() + ftr)
print('wrote', out, 'lines', len(a.lines), 'auto-nops', a.nops_inserted)
```

```python
import sys, os, struct
sys.path.insert(0, os.path.dirname(os.path.abspath(__file__)))
from asmlib import Asm, parse

KNAME = 'standalone__softmax_full_causal__prompt_kernel'
ENV = os.environ.get

O = 0
S = [64, 80]
NEGM = 96
Q = 112
F = 144
P = 176
T = 184
AK = 192
AV = 200
VOK0, VOK1, VOV = 204, 205, 206
L, SU, JJ, NINF = 207, 208, 209, 210
TMP = 211
LANE = 223
QOFF = 224
TAB = 225
XADDR = 226
NV = 228

sW, sG, sWQ = 24, 25, 26
sI, s2I, sKEYA, sKEYB, sN = 27, 28, 29, 30, 31
sKQ, sVQ, sFULL = 32, 33, 34
sPOSK, sPOSV, sNS, sCNT = 35, 36, 37, 38
sHKS, sHKM = 39, 40
sMASK, sTHR, sLO = 41, 42, 43
sRET2 = 44
sRET1 = 46
sT0 = 48
sW2K = 56
sROW = 57
sNW = 58
sKLIM, sVLIM = 59, 60
sROWB = 61
sMK, sMV = 62, 63
sC = 64
sKOFF, sVOFF = 72, 73
sSC = 74

LDS_V = 65536
LDS_STASH = 131072
LDS_BYTES = 163840
THR = 0x43800000
SCALE = 0.08838834764831845 * 1.4426950408889634

def f32bits(x):
    return struct.unpack('<I', struct.pack('<f', x))[0]

a = Asm()
KVF = (' ' + ENV('KVF')) if ENV('KVF') else ''
QNT = '' if ENV('NOQNT') else ' nt'
_orig_call = Asm.__call__
in_stage = [False]
def _filt(self, text):
    if in_stage[0]:
        if ENV('NOWAIT') and text.startswith('s_waitcnt lgkm'):
            return
        if ENV('NOLDS') and text.startswith('ds_read'):
            return
        if ENV('NOEXP') and text.startswith('v_exp'):
            return
        if ENV('NOADD') and text.startswith('v_add_f32'):
            return
        if ENV('NOCVT') and text.startswith('v_cvt'):
            return
        if ENV('NOPV') and text.startswith('v_mfma') and text.split()[1].startswith('v[') and int(text.split()[1][2:].split(':')[0]) < 64:
            return
    _orig_call(self, text)
Asm.__call__ = _filt
uid = [0]
def newlab(p):
    uid[0] += 1
    return 'L_%s_%d' % (p, uid[0])

def vr(base, n):
    return 'v[%d:%d]' % (base, base + n - 1)

def assume(text):
    a.hist.append(parse(text))

STAMPS = ENV('STAMPS')
stamp_n = [0]
def stamp():
    if not STAMPS:
        return
    k = stamp_n[0]
    stamp_n[0] += 1
    a('s_waitcnt lgkmcnt(0)')
    a('s_memtime s[76:77]')
    a('s_waitcnt lgkmcnt(0)')
    a(f's_mov_b32 s{80 + k}, s76')
    if k == 0:
        a('s_memrealtime s[76:77]')
        a('s_waitcnt lgkmcnt(0)')
        a('s_mov_b32 s94, s76')
def stamp_store():
    if not STAMPS:
        return
    stamp()
    a('s_memrealtime s[76:77]')
    a('s_waitcnt lgkmcnt(0)')
    a('s_mov_b32 s95, s76')
    a('s_load_dwordx2 s[76:77], s[0:1], 40')
    a('s_waitcnt lgkmcnt(0)')
    a('s_mov_b32 s78, 0x10000000')
    a('s_mov_b32 s79, 0x00020000')
    a(f's_lshl_b32 s53, s2, 3')
    a(f's_add_u32 s53, s53, s{sW}')
    a('s_lshl_b32 s53, s53, 6')
    a(f'v_mov_b32 v{TMP}, 0')
    for k in range(stamp_n[0]):
        a(f'v_mov_b32 v{TMP + 1}, s{80 + k}')
        a(f'buffer_store_dword v{TMP + 1}, v{TMP}, s[76:79], s53 offen offset:{4 * k}')
        a('s_nop 2')
    for k in (14, 15):
        a(f'v_mov_b32 v{TMP + 1}, s{80 + k}')
        a(f'buffer_store_dword v{TMP + 1}, v{TMP}, s[76:79], s53 offen offset:{4 * k}')
        a('s_nop 2')

def dma_pair(which, soff):
    if which == 'K':
        a(f'buffer_load_dwordx4 v{VOK0}, s[12:15], s{soff} offen' + KVF + ' lds')
        a(f'buffer_load_dwordx4 v{VOK1}, s[12:15], s{soff} offen offset:1024' + KVF + ' lds')
    else:
        a(f'buffer_load_dwordx4 v{VOV}, s[16:19], s{soff} offen' + KVF + ' lds')
        a(f'buffer_load_dwordx4 v{VOV}, s[16:19], s{soff} offen offset:1024' + KVF + ' lds')

def issue(which):
    ptr, m, off = (sKQ, sMK, sKOFF) if which == 'K' else (sVQ, sMV, sVOFF)
    skip = newlab('skipdma')
    a(f'v_readlane_b32 s{off}, v{TAB}, s{ptr}')
    a(f's_cmp_ge_u32 s{ptr}, s{sN}')
    a(f's_cbranch_scc1 {skip}')
    a(f's_mov_b32 m0, s{m}')
    a(f's_add_u32 s{ptr}, s{ptr}, 1')
    a(f's_add_u32 s{m}, s{m}, 0x4000')
    if which == 'K':
        a(f's_and_b32 s{m}, s{m}, 0xffff')
    else:
        a(f's_and_b32 s{m}, s{m}, 0xffff')
        a(f's_or_b32 s{m}, s{m}, 0x10000')
    dma_pair(which, off)
    a.label(skip)

def hk_parts(dma, sphase=False):
    sync = ['s_waitcnt vmcnt(8) lgkmcnt(0)' if sphase else 's_waitcnt vmcnt(4)']
    if not ENV('NOBAR'):
        sync.append('s_barrier')
    post = []
    if dma:
        d = lambda t: [] if ENV('NODMA') else [t]
        post = [
            [f's_mov_b32 m0, s{sMK}', f's_add_u32 s{sMK}, s{sMK}, 0x4000'] + d(f'buffer_load_dwordx4 v{VOK0}, s[12:15], s{sKOFF} offen' + KVF + ' lds'),
            [f's_and_b32 s{sMK}, s{sMK}, 0xffff'] + d(f'buffer_load_dwordx4 v{VOK1}, s[12:15], s{sKOFF} offen offset:1024' + KVF + ' lds'),
            [f's_mov_b32 m0, s{sMV}', f's_add_u32 s{sMV}, s{sMV}, 0x4000'] + d(f'buffer_load_dwordx4 v{VOV}, s[16:19], s{sVOFF} offen' + KVF + ' lds'),
            [f's_and_b32 s{sMV}, s{sMV}, 0xffff'] + d(f'buffer_load_dwordx4 v{VOV}, s[16:19], s{sVOFF} offen offset:1024' + KVF + ' lds'),
            [f's_or_b32 s{sMV}, s{sMV}, 0x10000', f's_add_u32 s{sKQ}, s{sKQ}, 1'],
            [f's_add_u32 s{sVQ}, s{sVQ}, 1', f'v_readlane_b32 s{sKOFF}, v{TAB}, s{sKQ}'],
            [f'v_readlane_b32 s{sVOFF}, v{TAB}, s{sVQ}'],
        ]
    return sync, post

def load_offs():
    a(f'v_readlane_b32 s{sKOFF}, v{TAB}, s{sKQ}')
    a(f'v_readlane_b32 s{sVOFF}, v{TAB}, s{sVQ}')

def kread(j, off):
    a(f'ds_read_b128 {vr(F + 4 * j, 4)}, v{AK + j} offset:{off}')

def vread(j, off):
    t, db = j // 4, j % 4
    a(f'ds_read_b64_tr_b16 {vr(F + 4 * j, 2)}, v{AV + db} offset:{off + (16 * t) * 256}')
    a(f'ds_read_b64_tr_b16 {vr(F + 4 * j + 2, 2)}, v{AV + db} offset:{off + (16 * t + 8) * 256}')

def pv_mfma(j):
    t, db = j // 4, j % 4
    a(f'v_mfma_f32_32x32x16_bf16 {vr(O + 16 * db, 16)}, {vr(F + 4 * j, 4)}, {vr(P + 4 * t, 4)}, {vr(O + 16 * db, 16)}')

def qk_mfma(j, sb):
    c = NEGM if j == 0 else S[sb]
    a(f'v_mfma_f32_32x32x16_bf16 {vr(S[sb], 16)}, {vr(F + 4 * j, 4)}, {vr(Q + 4 * j, 4)}, {vr(c, 16)}')

def setpos(snew):
    t1 = sT0 + 7
    for pos, base, n in ((sPOSK, AK, 8), (sPOSV, AV, 4)):
        a(f's_sub_u32 s{t1}, s{snew}, s{pos}')
        a(f's_mov_b32 s{pos}, s{snew}')
        for k in range(n):
            a(f'v_add_u32 v{base + k}, s{t1}, v{base + k}')

def toggle_ops(which):
    pos, base, n = (sPOSK, AK, 8) if which == 'K' else (sPOSV, AV, 4)
    return [f's_xor_b32 s{pos}, s{pos}, 0x8000'] + [f'v_xor_b32 v{base + k}, 0x8000, v{base + k}' for k in range(n)]

def sm_plan(b):
    s = S[b]
    e = lambda r: f'v_exp_f32 v{T + r % 8}, v{s + r}'
    def ad(r):
        if r == 1:
            return f'v_add_f32 v{SU}, v{T}, v{T + 1}'
        return f'v_add_f32 v{SU}, v{SU}, v{T + r % 8}'
    c = lambda k: f'v_cvt_pk_bf16_f32 v{P + k}, v{T + (2 * k) % 8}, v{T + (2 * k + 1) % 8}'
    plan = {
        1: [e(0), e(1)], 2: [e(2), e(3), ad(1)], 3: [e(4), e(5), ad(2), c(0)],
        4: [e(6), e(7), ad(3), c(1)], 5: [e(8), ad(4), ad(5), c(2)], 6: [e(9), ad(6), ad(7), c(3)],
        7: [e(10), ad(8)], 8: [e(11), ad(9), c(4)], 9: [e(12), ad(10)], 10: [e(13), ad(11), c(5)],
        11: [e(14), ad(12)], 12: [e(15), ad(13), c(6)], 13: [ad(14)], 14: [ad(15), c(7)],
        15: [f'v_cmp_lt_f32 vcc, s{sTHR}, v{SU}'],
    }
    return plan

def mask_code(b):
    s = S[b]
    cr = [8 * (r // 4) + r % 4 for r in range(16)]
    pend = []
    for r in range(16):
        sp = sC + 2 * (r % 4)
        a(f'v_cmp_le_i32_e64 s[{sp}:{sp + 1}], {cr[r]}, v{JJ}')
        pend.append((r, sp))
        if len(pend) == 4:
            rr, spp = pend.pop(0)
            a(f'v_cndmask_b32_e64 v{s + rr}, v{NINF}, v{s + rr}, s[{spp}:{spp + 1}]')
    for rr, spp in pend:
        a(f'v_cndmask_b32_e64 v{s + rr}, v{NINF}, v{s + rr}, s[{spp}:{spp + 1}]')

rare_sites = []

class DSQ:
    def __init__(self, init):
        self.q = list(init)
        self.done = 0
    def push(self, tag):
        self.q.append(tag)
    def need(self, tags):
        last = max([i for i, t in enumerate(self.q) if t in tags], default=-1)
        if last < self.done:
            return
        n = len(self.q) - 1 - last
        assert n <= 15
        a(f's_waitcnt lgkmcnt({n})')
        self.done = last + 1

def stage(name, b, has_prev, has_next, koff, voff, hk=None, ylate=False,
          ktog=False, vtog=False, maskable=False):
    a.label(name)
    in_stage[0] = True
    assume(f'v_mfma_f32_32x32x16_bf16 {vr(S[b], 16)}, {vr(F, 4)}, {vr(Q, 4)}, {vr(S[b], 16)}')
    assume('s_nop 1')
    assume(f'v_cvt_pk_bf16_f32 v{P + 7}, v{T}, v{T + 1}')
    plan = sm_plan(b)
    dq = DSQ([('V', j) for j in range(8) for _ in range(2)] if has_prev else [])
    sync, post = hk_parts(hk in ('dma', 'sdma'), hk in ('sdma', 'ssync')) if (hk and not ENV('NOHK')) else ([], [])
    if hk == 'gsync':
        sync, post = ['s_waitcnt vmcnt(0)', 's_barrier'], []
    ylate = ylate and has_prev and bool(sync)
    bar_gap = int(ENV('BARGAP') or 4) if ylate else 0
    def kr(j):
        kread(j, koff); dq.push(('K', j))
    def vrd(j):
        vread(j, voff); dq.push(('V2', j)); dq.push(('V2', j))
    if ktog:
        for op in toggle_ops('K'):
            a(op)
    vt = toggle_ops('V') if vtog else []
    if not has_next:
        for op in vt:
            a(op)
        vt = []
    if not ylate:
        for op in sync:
            a(op)
            if 'lgkmcnt(0)' in op:
                dq.done = len(dq.q)
    if maskable:
        mask_code(b)
    if not has_prev:
        for j in range(8):
            if has_next:
                kr(j)
            else:
                vrd(j)
    g1reads = {g: [g] for g in range(8)}
    if ylate:
        g1reads = {4: [0, 1], 5: [2, 3], 6: [4, 5], 7: [6, 7]} if bar_gap == 4 else {2: [0, 1], 3: [2, 3], 4: [4], 5: [5], 6: [6], 7: [7]} if bar_gap == 2 else {6: [0, 1, 2, 3], 7: [4, 5, 6, 7]}
    for g in range(16):
        if ylate and g == bar_gap:
            for op in sync:
                a(op)
                if 'lgkmcnt(0)' in op:
                    dq.done = len(dq.q)
        if g < 8:
            j = g
            if has_prev:
                if j % 2 == 0:
                    dq.need({('V', j), ('V', j + 1)})
                pv_mfma(j)
                for jj in g1reads.get(g, []):
                    if has_next:
                        kr(jj)
                    else:
                        vrd(jj)
        else:
            j = g - 8
            if has_next:
                if j % 2 == 0:
                    dq.need({('K', j), ('K', j + 1)})
                qk_mfma(j, 1 - b)
                vrd(j)
        k = g - bar_gap - int(ENV('POSTSHIFT') or 0)
        if ENV('POSTSPREAD'):
            k = (g - bar_gap) // 2 if (g - bar_gap) % 2 == 0 and g >= bar_gap else -1
        if 0 <= k < len(post):
            for op in post[k]:
                a(op)
        for op in plan.get(g, []):
            a(op)
        if g == 6:
            for op in vt:
                a(op)
    site = newlab('rare')
    back = newlab('back')
    a(f's_cbranch_vccnz {site}')
    a.label(back)
    a(f'v_add_f32 v{L}, v{L}, v{SU}')
    rare_sites.append((site, back, b, has_next))
    in_stage[0] = False

def prescale_frag(j):
    for r in range(4 * j, 4 * j + 4):
        t0, t1 = TMP + (2 * r) % 8, TMP + (2 * r + 1) % 8
        a(f'v_lshlrev_b32 v{t0}, 16, v{Q + r}')
        a(f'v_and_b32 v{t1}, 0xffff0000, v{Q + r}')
        a(f'v_mul_f32 v{t0}, s{sSC}, v{t0}')
        a(f'v_mul_f32 v{t1}, s{sSC}, v{t1}')
        a(f'v_cvt_pk_bf16_f32 v{Q + r}, v{t0}, v{t1}')

def max_init():
    s = S[0]
    t0, t1, dl = TMP, TMP + 1, TMP + 2
    a(f'v_max3_f32 v{t0}, v{s}, v{s + 1}, v{s + 2}')
    for r in range(3, 15, 2):
        a(f'v_max3_f32 v{t0}, v{t0}, v{s + r}, v{s + r + 1}')
    a(f'v_max_f32 v{t0}, v{t0}, v{s + 15}')
    a(f'v_mov_b32 v{t1}, v{t0}')
    a(f'v_permlane32_swap_b32 v{t0}, v{t1}')
    a(f'v_max_f32 v{dl}, v{t0}, v{t1}')
    for r in range(16):
        a(f'v_sub_f32 v{s + r}, v{s + r}, v{dl}')
    for r in range(16):
        a(f'v_sub_f32 v{NEGM + r}, 0, v{dl}')
    a(f's_mov_b32 s{sTHR}, {THR:#x}')
    a(f's_mov_b32 s{sLO}, 0')

def head(koff, jit=False, init=None):
    if not jit:
        a.fence()
    for j in range(8):
        kread(j, koff)
    extra = ['V', 'K', 'V', 'K'] if jit else []
    for j in range(8):
        if jit:
            a(f's_waitcnt lgkmcnt({15 - j})')
            prescale_frag(j)
        if j % 2 == 0:
            a(f's_waitcnt lgkmcnt({6 - j})')
        qk_mfma(j, 0)
        if jit and j % 2 == 1:
            issue(extra[j // 2])
    if init == 'always':
        max_init()
    elif init == 'cond':
        sk = newlab('noinit')
        a(f's_cmp_eq_u32 s{sLO}, 0')
        a(f's_cbranch_scc1 {sk}')
        max_init()
        a.label(sk)

def tail():
    assume(f'v_cvt_pk_bf16_f32 v{P + 7}, v{T}, v{T + 1}')
    assume(f'v_cvt_pk_bf16_f32 v{P}, v{T}, v{T + 1}')
    for j in range(8):
        if j % 2 == 0:
            a(f's_waitcnt lgkmcnt({12 - 2 * j})')
        pv_mfma(j)
    a.fence()

def rare_body(b, fix):
    a.label(f'L_rarebody_{b}_{int(fix)}')
    a.fence()
    s = S[b]
    t0, t1, dl, f = TMP, TMP + 1, TMP + 2, TMP + 3
    a(f'v_max3_f32 v{t0}, v{s}, v{s + 1}, v{s + 2}')
    for r in range(3, 15, 2):
        a(f'v_max3_f32 v{t0}, v{t0}, v{s + r}, v{s + r + 1}')
    a(f'v_max_f32 v{t0}, v{t0}, v{s + 15}')
    a(f'v_mov_b32 v{t1}, v{t0}')
    a(f'v_permlane32_swap_b32 v{t0}, v{t1}')
    a(f'v_max3_f32 v{dl}, v{t0}, v{t1}, s{sLO}')
    a(f'v_max_f32 v{t0}, 0, v{dl}')
    a(f'v_exp_f32_e64 v{f}, -v{t0}')
    for r in range(16):
        a(f'v_sub_f32 v{NEGM + r}, v{NEGM + r}, v{dl}')
    for r in range(16):
        a(f'v_sub_f32 v{s + r}, v{s + r}, v{dl}')
    if fix:
        for r in range(16):
            a(f'v_sub_f32 v{S[1 - b] + r}, v{S[1 - b] + r}, v{dl}')
    sk = newlab('norescale')
    a(f's_cmp_lg_u32 s{sLO}, 0')
    a(f's_cbranch_scc1 {sk}')
    a(f'v_mul_f32 v{L}, v{L}, v{f}')
    for r in range(64):
        a(f'v_mul_f32 v{O + r}, v{O + r}, v{f}')
    a.label(sk)
    for half in range(2):
        for r in range(8):
            a(f'v_exp_f32 v{T + r}, v{s + 8 * half + r}')
        for r in range(8):
            if half == 0 and r == 0:
                continue
            if half == 0 and r == 1:
                a(f'v_add_f32 v{SU}, v{T}, v{T + 1}')
            else:
                a(f'v_add_f32 v{SU}, v{SU}, v{T + r}')
        for k in range(4):
            a(f'v_cvt_pk_bf16_f32 v{P + 4 * half + k}, v{T + 2 * k}, v{T + 2 * k + 1}')
    a(f's_mov_b32 s{sTHR}, {THR:#x}')
    a(f's_mov_b32 s{sLO}, 0')
    a('s_nop 1')
    a(f's_setpc_b64 s[{sRET2}:{sRET2 + 1}]')

def store_block(dbs, inv, srow):
    for n, db in enumerate(dbs):
        for h2 in range(2):
            base = O + 16 * db + 8 * h2
            c = 212 + 4 * ((2 * n + h2) % 2)
            for r in range(8):
                a(f'v_mul_f32 v{base + r}, v{base + r}, v{inv}')
            for k in range(4):
                a(f'v_cvt_pk_bf16_f32 v{c + k}, v{base + 2 * k}, v{base + 2 * k + 1}')
            a(f'v_permlane32_swap_b32 v{c}, v{c + 2}')
            a(f'v_permlane32_swap_b32 v{c + 1}, v{c + 3}')
            a(f'buffer_store_dwordx4 {vr(c, 4)}, v{QOFF}, s[20:23], s{srow} offen offset:{db * 64 + h2 * 32}' + (' ' + ENV('STFLAG') if ENV('STFLAG') else ''))

def store_block_lds(inv, srow):
    wa, ra, ga = S[0], S[0] + 1, S[0] + 2
    t0, t1 = S[0] + 3, S[0] + 4
    a(f's_lshl_b32 s53, s{sW}, 12')
    a(f's_add_u32 s53, s53, {LDS_STASH}')
    a(f'v_and_b32 v{t0}, 31, v{LANE}')
    a(f'v_lshrrev_b32 v{t1}, 5, v{LANE}')
    a(f'v_and_b32 v{wa}, 7, v{t0}')
    a(f'v_xor_b32 v{wa}, v{wa}, v{t1}')
    a(f'v_lshlrev_b32 v{t0}, 7, v{t0}')
    a(f'v_add_u32 v{t0}, s53, v{t0}')
    for q in range(4):
        a(f'v_xor_b32 v{t1}, {2 * q}, v{wa}')
        a(f'v_lshl_add_u32 v{S[1] + q}, v{t1}, 4, v{t0}')
    a(f'v_lshrrev_b32 v{t0}, 3, v{LANE}')
    a(f'v_and_b32 v{t1}, 7, v{LANE}')
    a(f'v_xor_b32 v{ra}, v{t0}, v{t1}')
    a(f'v_lshlrev_b32 v{ra}, 4, v{ra}')
    a(f'v_lshl_add_u32 v{ra}, v{t0}, 7, v{ra}')
    a(f'v_add_u32 v{ra}, s53, v{ra}')
    a(f'v_lshlrev_b32 v{ga}, 4, v{t1}')
    a(f'v_lshl_add_u32 v{ga}, v{t0}, 8, v{ga}')
    for rnd in range(2):
        for q in range(4):
            db, h2 = 2 * rnd + q // 2, q % 2
            base = O + 16 * db + 8 * h2
            c = F + 4 * q
            for r in range(8):
                a(f'v_mul_f32 v{base + r}, v{base + r}, v{inv}')
            for k in range(4):
                a(f'v_cvt_pk_bf16_f32 v{c + k}, v{base + 2 * k}, v{base + 2 * k + 1}')
            a(f'v_permlane32_swap_b32 v{c}, v{c + 2}')
            a(f'v_permlane32_swap_b32 v{c + 1}, v{c + 3}')
            if rnd == 1 and q == 0:
                a('s_waitcnt lgkmcnt(0)')
            a(f'ds_write_b128 v{S[1] + q}, {vr(c, 4)}')
        a('s_waitcnt lgkmcnt(0)')
        for k in range(4):
            a(f'ds_read_b128 {vr(F + 16 + 4 * k, 4)}, v{ra} offset:{1024 * k}')
        for k in range(4):
            a(f's_waitcnt lgkmcnt({3 - k})')
            fl = ' ' + (ENV('STFLAG') or 'sc1')
            a(f'buffer_store_dwordx4 {vr(F + 16 + 4 * k, 4)}, v{ga}, s[20:23], s{srow if k < 2 else 54} offen offset:{2048 * (k % 2) + 128 * rnd}' + fl)

def reset_state():
    for r in range(64):
        a(f'v_mov_b32 v{O + r}, 0')
    for r in range(16):
        a(f'v_mov_b32 v{NEGM + r}, 0')
    a(f'v_mov_b32 v{L}, 0')
    a(f's_mov_b32 s{sTHR}, -1.0')
    a(f's_mov_b32 s{sLO}, 0xff800000')

def prescale_q():
    a(f's_mov_b32 s53, {f32bits(SCALE):#x}')
    for r in range(32):
        t0, t1 = TMP + (2 * r) % 8, TMP + (2 * r + 1) % 8
        a(f'v_lshlrev_b32 v{t0}, 16, v{Q + r}')
        a(f'v_and_b32 v{t1}, 0xffff0000, v{Q + r}')
        a(f'v_mul_f32 v{t0}, s53, v{t0}')
        a(f'v_mul_f32 v{t1}, s53, v{t1}')
        a(f'v_cvt_pk_bf16_f32 v{Q + r}, v{t0}, v{t1}')

def call(label, ret):
    a(f's_call_b64 s[{ret}:{ret + 1}], {label}')

a.label(KNAME)
a('s_cmp_ge_u32 s2, 256')
a('s_cbranch_scc1 L_END')
stamp()
a('s_load_dwordx4 s[4:7], s[0:1], 0')
a('s_load_dwordx4 s[48:51], s[0:1], 16')
l32, h, l16, g4, r4, c4 = TMP, TMP + 1, TMP + 2, TMP + 3, TMP + 4, TMP + 5
x, y, z = TMP + 6, TMP + 7, TMP + 8
a(f'v_lshrrev_b32 v{x}, 6, v0')
a(f'v_and_b32 v{LANE}, 63, v0')
a(f'v_readfirstlane_b32 s{sW}, v{x}')
if ENV('CPF'):
    a('s_getpc_b64 s[90:91]')
    a(f'v_lshlrev_b32 v{y}, 7, v0')
    a(f's_cmp_ge_u32 s{sW}, 3')
    a('s_cbranch_scc1 L_NOCPF')
    a(f'global_load_dword v{XADDR}, v{y}, s[90:91]')
    a.label('L_NOCPF')
a('s_and_b32 s52, s2, 7')
a('s_lshr_b32 s53, s2, 3')
a('s_and_b32 s54, s53, 3')
a('s_lshl_b32 s52, s52, 2')
a('s_add_u32 s52, s52, s54')
a(f's_lshr_b32 s{sI}, s53, 2')
a('s_lshl_b32 s52, s52, 19')
a(f'v_and_b32 v{l32}, 31, v{LANE}')
a(f'v_lshrrev_b32 v{h}, 5, v{LANE}')
a(f'v_and_b32 v{l16}, 15, v{LANE}')
a(f'v_lshrrev_b32 v{g4}, 4, v{LANE}')
a(f's_and_b32 s{sWQ}, s{sW}, 3')
a(f's_lshl_b32 s{sKEYB}, s{sI}, 7')
a(f's_sub_u32 s{sKEYA}, 1920, s{sKEYB}')
a(f's_lshl_b32 s{sW2K}, s{sW}, 11')
a(f's_sub_u32 s53, 3, s{sWQ}')
a('s_lshl_b32 s53, s53, 5')
a(f's_add_u32 s53, s53, s{sKEYA}')
a(f's_lshl_b32 s{sROW}, s53, 8')
a(f'v_lshlrev_b32 v{x}, 8, v{l32}')
a(f'v_lshl_add_u32 v{QOFF}, v{h}, 4, v{x}')
a(f's_and_b32 s53, s{sW}, 1')
a('s_lshl_b32 s53, s53, 3')
a(f'v_add_u32 v{y}, s53, v{g4}')
a(f'v_xor_b32 v{y}, v{y}, v{l16}')
a(f'v_lshlrev_b32 v{x}, 8, v{g4}')
a(f'v_lshl_add_u32 v{VOK0}, v{y}, 4, v{x}')
a(f'v_xor_b32 v{y}, 4, v{y}')
a(f'v_lshl_add_u32 v{VOK1}, v{y}, 4, v{x}')
a(f's_add_u32 s{sKOFF}, s{sW2K}, {896 * 256}')
if ENV('ASC'):
    a(f's_lshl_b32 s{sKOFF}, s{sKEYB}, 8')
    a(f's_add_u32 s{sKOFF}, s{sKOFF}, s{sW2K}')
if ENV('DESC'):
    a(f's_sub_u32 s{sKOFF}, s{sKEYA}, 64')
    a(f's_lshl_b32 s{sKOFF}, s{sKOFF}, 8')
    a(f's_add_u32 s{sKOFF}, s{sKOFF}, s{sW2K}')
a(f's_mov_b32 m0, s{sW2K}')
a('s_mov_b32 s10, 0x80000')
a('s_mov_b32 s11, 0x00020000')
a('s_mov_b32 s14, 0x80000')
a('s_mov_b32 s15, 0x00020000')
a('s_mov_b32 s18, 0x80000')
a('s_mov_b32 s19, 0x00020000')
a(f'v_lshlrev_b32 v{y}, 2, v{g4}')
a(f'v_xor_b32 v{y}, v{y}, v{l16}')
a(f'v_lshl_add_u32 v{VOV}, v{y}, 4, v{x}')
a('s_waitcnt lgkmcnt(0)')
if ENV('PSTAMPS'): stamp()
a('s_add_u32 s8, s4, s52')
a('s_addc_u32 s9, s5, 0')
a('s_add_u32 s12, s6, s52')
a('s_addc_u32 s13, s7, 0')
a('s_add_u32 s16, s48, s52')
a('s_addc_u32 s17, s49, 0')
dma_pair('K', sKOFF)
a(f's_lshl_b32 s53, s{sKEYA}, 8')
a(f's_add_u32 s53, s53, s{sW2K}')
a(f's_add_u32 s54, s{sW2K}, {LDS_STASH}')
a('s_mov_b32 m0, s54')
a('s_add_u32 s55, s53, 16384')
a(f'buffer_load_dwordx4 v{VOK0}, s[8:11], s53 offen' + QNT + ' lds')
a(f'buffer_load_dwordx4 v{VOK1}, s[8:11], s53 offen offset:1024' + QNT + ' lds')
a('s_add_u32 s54, s54, 16384')
a('s_mov_b32 m0, s54')
a('s_nop 0')
a(f'buffer_load_dwordx4 v{VOK0}, s[8:11], s55 offen' + QNT + ' lds')
a(f'buffer_load_dwordx4 v{VOK1}, s[8:11], s55 offen offset:1024' + QNT + ' lds')
a(f's_add_u32 s54, s{sW2K}, 0x10000')
a('s_mov_b32 m0, s54')
a(f's_add_u32 s55, s{sKOFF}, 16384')
dma_pair('V', sKOFF)
a(f's_add_u32 s54, s{sW2K}, 0x4000')
a('s_mov_b32 m0, s54')
a('s_nop 0')
dma_pair('K', 55)
a('s_add_u32 s20, s50, s52')
a('s_addc_u32 s21, s51, 0')
a('s_mov_b32 s22, 0x80000')
a('s_mov_b32 s23, 0x00020000')
a(f's_lshr_b32 s{sG}, s{sW}, 2')
a(f's_lshl_b32 s{s2I}, s{sI}, 1')
a(f's_sub_u32 s{sN}, 34, s{s2I}')
a(f's_lshl_b32 s53, s{sI}, 2')
a(f's_sub_u32 s{sNS}, 30, s53')
a(f's_lshl_b32 s53, s{sWQ}, 5')
a(f's_add_u32 s53, s53, s{sKEYB}')
a(f's_lshl_b32 s{sROWB}, s53, 8')
a(f's_sub_u32 s53, 4, s{sWQ}')
a(f's_add_u32 s54, s{sWQ}, 1')
a(f's_cmp_eq_u32 s{sG}, 0')
a(f's_cselect_b32 s{sNW}, s53, s54')
a(f's_mov_b32 s{sKQ}, 2')
a(f's_mov_b32 s{sVQ}, 1')
a(f's_add_u32 s{sMK}, s{sW2K}, 0x8000')
a(f's_add_u32 s{sMV}, s{sW2K}, 0x14000')
a(f'v_bfe_u32 v{r4}, v{LANE}, 2, 2')
a(f'v_and_b32 v{c4}, 3, v{LANE}')
a(f'v_lshrrev_b32 v{x}, 1, v{LANE}')
a(f'v_lshlrev_b32 v{x}, 6, v{x}')
a(f'v_sub_u32 v{y}, 896, v{x}')
a(f'v_add_u32 v{x}, 960, v{x}')
a(f'v_and_b32 v{z}, 1, v{LANE}')
a(f'v_cmp_eq_u32 vcc, 1, v{z}')
a(f'v_cndmask_b32 v{TAB}, v{y}, v{x}, vcc')
if ENV('ASC'):
    a(f'v_lshlrev_b32 v{TAB}, 6, v{LANE}')
    a(f'v_add_u32 v{TAB}, s{sKEYB}, v{TAB}')
if ENV('DESC'):
    a(f'v_lshlrev_b32 v{TAB}, 6, v{LANE}')
    a(f'v_sub_u32 v{TAB}, s{sKEYA}, v{TAB}')
    a(f'v_subrev_u32 v{TAB}, 64, v{TAB}')
a(f'v_subrev_u32 v{x}, s{sNS}, v{LANE}')
a(f'v_lshlrev_b32 v{y}, 6, v{x}')
a(f'v_cmp_le_i32 vcc, 0, v{x}')
a(f'v_cndmask_b32 v{TAB}, v{TAB}, v{y}, vcc')
a(f'v_subrev_u32 v{x}, s{s2I}, v{x}')
a(f'v_and_b32 v{z}, 1, v{x}')
a(f'v_mov_b32 v{y}, s{sKEYA}')
a(f'v_mov_b32 v{TMP + 9}, s{sKEYB}')
a(f'v_cmp_eq_u32 vcc, 1, v{z}')
a(f'v_cndmask_b32 v{y}, v{y}, v{TMP + 9}, vcc')
a(f'v_lshrrev_b32 v{z}, 1, v{x}')
a(f'v_and_b32 v{z}, 1, v{z}')
a(f'v_lshl_add_u32 v{y}, v{z}, 6, v{y}')
a(f'v_cmp_le_i32 vcc, 0, v{x}')
a(f'v_cndmask_b32 v{TAB}, v{TAB}, v{y}, vcc')
a(f'v_lshlrev_b32 v{TAB}, 8, v{TAB}')
a(f'v_add_u32 v{TAB}, s{sW2K}, v{TAB}')
a(f's_lshl_b32 s{sPOSK}, s{sG}, 13')
a(f's_mov_b32 s{sPOSV}, s{sPOSK}')
a(f'v_lshlrev_b32 v{x}, 8, v{l32}')
a(f'v_add_u32 v{x}, s{sPOSK}, v{x}')
for s_ in range(8):
    a(f'v_add_u32 v{y}, {2 * s_}, v{h}')
    a(f'v_xor_b32 v{y}, v{y}, v{l16}')
    a(f'v_lshl_add_u32 v{AK + s_}, v{y}, 4, v{x}')
a(f'v_lshl_add_u32 v{x}, v{h}, 2, v{r4}')
a(f'v_lshlrev_b32 v{x}, 8, v{x}')
a(f'v_add_u32 v{x}, {LDS_V}, v{x}')
a(f'v_add_u32 v{x}, s{sPOSV}, v{x}')
a(f'v_and_b32 v{y}, 1, v{c4}')
a(f'v_lshl_add_u32 v{x}, v{y}, 3, v{x}')
a(f'v_and_b32 v{y}, 1, v{g4}')
a(f'v_lshl_add_u32 v{x}, v{y}, 5, v{x}')
a(f'v_lshrrev_b32 v{y}, 1, v{c4}')
a(f'v_lshl_add_u32 v{x}, v{y}, 4, v{x}')
for db in range(4):
    a(f'v_xor_b32 v{y}, {db}, v{r4}')
    a(f'v_lshl_add_u32 v{AV + db}, v{y}, 6, v{x}')
a(f'v_lshlrev_b32 v{y}, 2, v{h}')
a(f'v_sub_u32 v{JJ}, v{l32}, v{y}')
a(f'v_mov_b32 v{NINF}, 0xff800000')
a(f'v_lshlrev_b32 v{XADDR}, 4, v{LANE}')
reset_state()
if ENV('PSTAMPS'): stamp()
a('s_waitcnt vmcnt(4)')
if ENV('PSTAMPS'): stamp()
stamp()
a('s_barrier')
a(f's_sub_u32 s53, 3, s{sWQ}')
a('s_lshl_b32 s53, s53, 13')
a(f's_add_u32 s54, s53, {LDS_STASH}')
a(f's_sub_u32 s54, s54, s{sPOSK}')
for s_ in range(8):
    a(f'v_add_u32 v{S[0] + s_}, s54, v{AK + s_}')
for s_ in range(8):
    a(f'ds_read_b128 {vr(Q + 4 * s_, 4)}, v{S[0] + s_}')
a(f's_mov_b32 s{sSC}, {f32bits(SCALE):#x}')
def stage_qb():
    for n_ in range(2):
        a(f's_lshl_b32 s53, s{sKEYB}, 8')
        a(f's_add_u32 s53, s53, s{sW2K}')
        if n_:
            a('s_add_u32 s53, s53, 16384')
        a(f's_add_u32 s54, s{sW2K}, {LDS_STASH + 16384 * n_}')
        a('s_mov_b32 m0, s54')
        a('s_nop 0')
        a(f'buffer_load_dwordx4 v{VOK0}, s[8:11], s53 offen' + QNT + ' lds')
        a(f'buffer_load_dwordx4 v{VOK1}, s[8:11], s53 offen offset:1024' + QNT + ' lds')
a(f's_sub_u32 s{sCNT}, 7, s{sI}')
a(f's_min_u32 s{sMASK}, s{sCNT}, 1')
head(0, jit=True, init='always')
load_offs()
if ENV('PSTAMPS'): stamp()
if ENV('PRIOX'):
    a('s_setprio 1')
a(f's_cmp_lg_u32 s{sG}, 0')
a('s_cbranch_scc1 L_S_PRE_Y')
for grp in ('X', 'Y'):
    yl = grp == 'Y'
    if yl:
        a.label('L_S_PRE_Y')
        if ENV('PRIOY'):
            a('s_setprio 1')
        if ENV('PRIOX'):
            a('s_setprio 0')
    stage(f'L_S_FIRST_{grp}', 0, False, True, 16384, 0, hk='sdma')
    a.label(f'L_S_LOOP_{grp}')
    a(f's_cmp_gt_u32 s{sCNT}, 1')
    a(f's_cbranch_scc1 L_S_GO_{grp}')
    a(f's_cmp_eq_u32 s{sCNT}, s{sMASK}')
    a(f's_cbranch_scc0 L_S_NOQB_{grp}')
    stage_qb()
    a.label(f'L_S_NOQB_{grp}')
    a(f's_cmp_eq_u32 s{sCNT}, 0')
    a(f's_cbranch_scc1 L_S_LAST_{grp}')
    a.label(f'L_S_GO_{grp}')
    a(f's_sub_u32 s{sCNT}, s{sCNT}, 1')
    for p in (1, 2, 3, 0):
        stage(f'L_S_MID{p}_{grp}', p & 1, True, True, ((p + 1) & 3) * 16384, p * 16384, hk='sdma', ylate=yl)
    a(f's_branch L_S_LOOP_{grp}')
    stage(f'L_S_LAST_{grp}', 1, True, False, 0, 16384, hk='ssync', ylate=yl)
    if grp == 'X':
        a('s_branch L_S_TAIL')
a.label('L_S_TAIL')
tail()
stamp()
a('s_waitcnt vmcnt(0)')
a('s_barrier')
a(f's_lshl_b32 s53, s{sWQ}, 13')
a(f's_add_u32 s54, s53, {LDS_V}')
a(f'v_add_u32 v{TMP}, s54, v{XADDR}')
a(f's_add_u32 s54, s53, {LDS_STASH}')
a(f'v_add_u32 v{TMP + 1}, s54, v{XADDR}')
a(f's_lshl_b32 s54, s{sWQ}, 10')
a('s_add_u32 s54, s54, 16384')
a(f'v_add_u32 v{TMP + 2}, s54, v{XADDR}')
a(f's_cmp_eq_u32 s{sG}, 0')
a('s_cbranch_scc1 L_MRG_X')
a(f's_add_u32 s54, s53, {LDS_STASH}')
a(f's_sub_u32 s54, s54, s{sPOSK}')
for s_ in range(8):
    a(f'v_add_u32 v{S[0] + s_}, s54, v{AK + s_}')
for s_ in range(8):
    a(f'ds_read_b128 {vr(Q + 4 * s_, 4)}, v{S[0] + s_}')
a(f'v_mov_b32 v{S[1]}, v{NEGM}')
a(f'v_mov_b32 v{S[1] + 1}, v{L}')
a(f'ds_write_b64 v{TMP + 2}, v[{S[1]}:{S[1] + 1}]')
for k in range(8):
    a(f'ds_write_b128 v{TMP}, {vr(O + 4 * k, 4)} offset:{1024 * k}')
a('s_waitcnt lgkmcnt(9)')
for k in range(8):
    a(f'ds_write_b128 v{TMP + 1}, {vr(O + 32 + 4 * k, 4)} offset:{1024 * k}')
a('s_waitcnt lgkmcnt(0)')
a('s_barrier')
prescale_q()
reset_state()
a(f's_mov_b32 s{sROW}, s{sROWB}')
a('s_branch L_MRG_J')
a.label('L_MRG_X')
a('s_barrier')
a(f'ds_read_b64 v[{P}:{P + 1}], v{TMP + 2}')
for k in range(8):
    a(f'ds_read_b128 {vr(S[0] + 4 * k, 4)}, v{TMP} offset:{1024 * k}')
for k in range(8):
    a(f'ds_read_b128 {vr(F + 4 * k, 4)}, v{TMP + 1} offset:{1024 * k}')
a('s_waitcnt lgkmcnt(15)')
nm, fo, fp = T, T + 1, T + 2
a(f'v_min_f32 v{nm}, v{NEGM}, v{P}')
a(f'v_sub_f32 v{fo}, v{nm}, v{NEGM}')
a(f'v_sub_f32 v{fp}, v{nm}, v{P}')
a(f'v_exp_f32 v{fo}, v{fo}')
a(f'v_exp_f32 v{fp}, v{fp}')
for r in range(16):
    a(f'v_mov_b32 v{NEGM + r}, v{nm}')
a(f'v_mul_f32 v{L}, v{L}, v{fo}')
a(f'v_fma_f32 v{L}, v{P + 1}, v{fp}, v{L}')
for r in range(64):
    a(f'v_mul_f32 v{O + r}, v{O + r}, v{fo}')
a('s_waitcnt lgkmcnt(8)')
for r in range(32):
    a(f'v_fma_f32 v{O + r}, v{S[0] + r}, v{fp}, v{O + r}')
a('s_waitcnt lgkmcnt(0)')
for r in range(32):
    a(f'v_fma_f32 v{O + 32 + r}, v{F + r}, v{fp}, v{O + 32 + r}')
a.label('L_MRG_J')
stamp()
a('s_waitcnt vmcnt(0)')
a('s_barrier')
issue('K'); issue('V')
a(f's_cmp_eq_u32 s{sI}, 0')
a('s_cbranch_scc1 L_G1_NOWAIT')
a(f's_sub_u32 s{sCNT}, s{sI}, 1')
a('s_mov_b32 s53, 0x8000')
setpos(53)
load_offs()
head(0, init='cond')
stage('L_D_FIRST', 0, False, True, 8192, 0)
a(f's_cmp_lg_u32 s{sG}, 0')
a('s_cbranch_scc1 L_D_MID1_Y')
for grp in ('X', 'Y'):
    yl = grp == 'Y'
    stage(f'L_D_MID1_{grp}', 1, True, True, 16384, 8192, hk='dma', ylate=yl)
    stage(f'L_D_MID2_{grp}', 0, True, True, 24576, 16384)
    a(f's_cmp_eq_u32 s{sCNT}, 0')
    a('s_cbranch_scc1 L_D_LAST')
    a(f's_sub_u32 s{sCNT}, s{sCNT}, 1')
    stage(f'L_D_MID3_{grp}', 1, True, True, 0, 24576, hk='dma', ylate=yl, ktog=True)
    stage(f'L_D_MID0_{grp}', 0, True, True, 8192, 0, vtog=True)
    a(f's_branch L_D_MID1_{grp}')
stage('L_D_LAST', 1, True, False, 0, 24576)
tail()
a('s_waitcnt vmcnt(0)')
a('s_barrier')
a.label('L_G1_NOWAIT')
stamp()
issue('V'); issue('K'); issue('V')
a(f's_add_u32 s53, s{s2I}, s{sG}')
a('s_add_u32 s53, s53, 2')
a('s_and_b32 s53, s53, 3')
a('s_lshl_b32 s53, s53, 14')
setpos(53)
head(0)
a(f's_cmp_eq_u32 s{sNW}, 1')
a('s_cbranch_scc1 L_G_SYNC1')
stage('L_G_FIRST', 0, False, True, 8192, 0)
a(f's_cmp_eq_u32 s{sNW}, 2')
a('s_cbranch_scc1 L_G_SYNC2')
stage('L_G_MID1', 1, True, True, 0, 8192, hk='gsync', ktog=True)
a(f's_cmp_eq_u32 s{sNW}, 3')
a('s_cbranch_scc1 L_G_LAST2')
stage('L_G_MID2', 0, True, True, 8192, 0, vtog=True)
stage('L_G_LAST1', 1, True, False, 0, 8192, maskable=True)
a('s_branch L_G_TAIL')
stage('L_G_LAST2', 0, True, False, 0, 0, vtog=True, maskable=True)
a('s_branch L_G_TAIL')
a.label('L_G_SYNC2')
a('s_waitcnt vmcnt(0)')
a('s_barrier')
a('s_branch L_G_LAST1')
a.label('L_G_SYNC1')
a('s_waitcnt vmcnt(0)')
a('s_barrier')
stage('L_G_ONLY', 0, False, False, 0, 0, maskable=True)
a.label('L_G_TAIL')
tail()
a.label('L_FIN')
stamp()
t0, t1 = TMP, TMP + 1
a(f'v_mov_b32 v{t0}, v{L}')
a(f'v_mov_b32 v{t1}, v{L}')
a(f'v_permlane32_swap_b32 v{t0}, v{t1}')
a(f'v_add_f32 v{t0}, v{t0}, v{t1}')
a(f'v_rcp_f32 v{t0}, v{t0}')
if ENV('OLDST'):
    store_block([0, 1, 2, 3], t0, sROW)
else:
    a(f's_add_u32 s54, s{sROW}, 4096')
    store_block_lds(t0, sROW)
stamp_store()
a.label('L_END')
a('s_endpgm')
for site, back, b, fx in rare_sites:
    a.label(site)
    call(f'L_rarebody_{b}_{int(fx)}', sRET2)
    a(f's_branch {back}')
for b in range(2):
    for fx in (False, True):
        rare_body(b, fx)

hdr = f"""; causal flash-attention forward, B=1 H=32 S=2048 D=128 bf16 (generated by gen/gen5.py)
; @launch grid=(256,1,1) block=(512,1,1) lds={LDS_BYTES}
.amdgcn_target "amdgcn-amd-amdhsa--gfx950"
.text
.globl {KNAME}
.p2align 8
.type {KNAME},@function
"""
ftr = f"""
.section .rodata,"a"
.p2align 6
.amdhsa_kernel {KNAME}
  .amdhsa_next_free_vgpr {NV}
  .amdhsa_next_free_sgpr 100
  .amdhsa_accum_offset {NV}
  .amdhsa_group_segment_fixed_size 0
  .amdhsa_kernarg_size 48
  .amdhsa_user_sgpr_count 2
  .amdhsa_user_sgpr_kernarg_segment_ptr 1
  .amdhsa_system_sgpr_workgroup_id_x 1
.end_amdhsa_kernel
"""
out = sys.argv[1] if len(sys.argv) > 1 else 'standalone__softmax_full_causal__prompt.s'
open(out, 'w').write(hdr + a.text() + ftr)
print('wrote', out, 'lines', len(a.lines), 'auto-nops', a.nops_inserted)
```
